```python
import torch

def _softmax(x, axis=-1):
    return torch.softmax(x, dim=axis)
def _gelu(x):
    return torch.nn.functional.gelu(x, approximate="tanh")
def _silu(x):
    return torch.nn.functional.silu(x)
def _sigmoid(x):
    return torch.sigmoid(x)
def _layernorm(x, axis=-1, eps=1e-5):
    m = x.mean(dim=axis, keepdim=True)
    v = x.var(dim=axis, keepdim=True, unbiased=False)
    return (x - m) / torch.sqrt(v + eps)
def _scatter_add(tgt, idx, src, axis=0):
    return tgt.clone().index_add_(axis, idx, src)
def _segment_sum(src, seg, n):
    out = torch.zeros((n,) + src.shape[1:], dtype=src.dtype)
    return out.index_add_(0, seg, src)
def _pad(x, pw):
    flat = tuple(v for pair in reversed(pw) for v in pair)
    return torch.nn.functional.pad(x, flat)

kernel_name = 'recurrent_scan__gqa_block_cached__glu_gated_bilinear__prompt'

def setup_inputs():

    _w = (lambda a: (lambda t: t.to(torch.bfloat16) if t.is_floating_point() else t)(torch.as_tensor(a)))
    def _A_setup():
        B, Sq, D = 1, 2048, 512
        Hq, Hkv, Sk, Dh = 32, 32, 2048, 128
        assert Hq % Hkv == 0, (Hq, Hkv)
        return {
            "x": _w((lambda *s: torch.randn(*s, dtype=torch.bfloat16) * 0.05)(B, Sq, D)),
            "k_cache": _w((lambda *s: torch.randn(*s, dtype=torch.bfloat16) * 1.6)(B, Hkv, Sk, Dh)),
            "v_cache": _w((lambda *s: torch.randn(*s, dtype=torch.bfloat16) * 1.6)(B, Hkv, Sk, Dh)),
            "wq": _w((lambda *s: torch.randn(*s, dtype=torch.bfloat16) * 1.6)(D, Hq * Dh) * (D ** -0.5)),
            "wo": _w((lambda *s: torch.randn(*s, dtype=torch.bfloat16) * 1.6)(Hq * Dh, D) * ((Hq * Dh) ** -0.5)),
        }
    _A_in = _A_setup()

    def _B_setup():
        B, S, D, F = 1, 2048, 512, 1376
        return {
            "x": _w((lambda *s: torch.randn(*s, dtype=torch.bfloat16) * 0.05)(B, S, D)),
            "w_gate": _w((lambda *s: torch.randn(*s, dtype=torch.bfloat16) * 0.2)(D, F) * (D ** -0.5)),
            "w_up": _w((lambda *s: torch.randn(*s, dtype=torch.bfloat16) * 0.2)(D, F) * (D ** -0.5)),
            "w_down": _w((lambda *s: torch.randn(*s, dtype=torch.bfloat16) * 0.2)(F, D) * (F ** -0.5)),
        }
    _B_in = _B_setup()

    return {
        "A_x": _A_in["x"],
        "A_k_cache": _A_in["k_cache"],
        "A_v_cache": _A_in["v_cache"],
        "A_wq": _A_in["wq"],
        "A_wo": _A_in["wo"],
        "B_x": _B_in["x"],
        "B_w_gate": _B_in["w_gate"],
        "B_w_up": _B_in["w_up"],
        "B_w_down": _B_in["w_down"],
    }

def reference(A_x, A_k_cache, A_v_cache, A_wq, A_wo, B_x, B_w_gate, B_w_up, B_w_down):
    def _A_ref(x, k_cache, v_cache, wq, wo):
        B, Sq, D = x.shape
        Hq, Dh = 32, 128
        Hkv = k_cache.shape[1]
        rep = Hq // Hkv
        q = (lambda x, *d: x.permute(*d))((x @ wq).reshape(B, Sq, Hq, Dh), 0, 2, 1, 3)
        k = (lambda x, n, axis: torch.repeat_interleave(x, n, dim=axis))(k_cache, rep, axis=1)
        v = (lambda x, n, axis: torch.repeat_interleave(x, n, dim=axis))(v_cache, rep, axis=1)
        scores = torch.einsum("bhqd,bhkd->bhqk", q, k) * (Dh ** -0.5)
        p = _softmax(scores, axis=-1)
        o = torch.einsum("bhqk,bhkd->bhqd", p, v)
        return (lambda x, *d: x.permute(*d))(o, 0, 2, 1, 3).reshape(B, Sq, Hq * Dh) @ wo

    def _B_ref(x, w_gate, w_up, w_down):
        g = torch.einsum("bsd,df->bsf", x, w_gate)
        u = torch.einsum("bsd,df->bsf", x, w_up)
        h = g * u
        return torch.einsum("bsf,fd->bsd", h, w_down)

    x = A_x
    xn = _layernorm(x, axis=-1)
    s = _A_ref(xn, A_k_cache, A_v_cache, A_wq, A_wo)
    g = _silu(_B_ref(xn, B_w_gate, B_w_up, B_w_down))
    return x + s * g
```

```python
import sys
NAME = "recurrent_scan__gqa_block_cached__glu_gated_bilinear__prompt"

class K:
    def __init__(s): s.l = []
    def I(s, t, *a):
        if a: t = t % a
        s.l.append("  " + t)
    def L(s, lab): s.l.append(lab + ":")
    def C(s, t): s.l.append("  ; " + t)
    def ext(s, lines):
        for x in lines:
            if x.endswith(":"): s.l.append(x)
            else: s.l.append("  " + x)
    def text(s): return "\n".join(s.l) + "\n"
def vr(b, n=4, t='v'): return "%s[%d:%d]" % (t, b, b + n - 1)
def ar(b, n=4): return vr(b, n, 'a')
MF = "v_mfma_f32_16x16x32_bf16"
NKS = 171
ACT_BYTES = 32 * NKS * 4096

def srd(k, d, lo, hi, nrec):
    k.I("s_mov_b32 s%d, s%d", d, lo)
    k.I("s_and_b32 s%d, s%d, 0xffff", d + 1, hi)
    if isinstance(nrec, str): k.I("s_mov_b32 s%d, %s", d + 2, nrec)
    else: k.I("s_mov_b32 s%d, 0x%x", d + 2, nrec)
    k.I("s_mov_b32 s%d, 0x20000", d + 3)

STAMPS = False
def stamp_init(k, kidx, wsl, wsh, wave_sgpr):
    if not STAMPS: return
    k.I("s_lshl_b32 s90, s2, 8")
    k.I("s_lshl_b32 s91, s%d, 6", wave_sgpr)
    k.I("s_add_u32 s90, s90, s91")
    k.I("s_add_u32 s90, s90, 0x%x", (64 << 20) + kidx * 65536)
    k.I("s_add_u32 s92, s%d, s90", wsl)
    k.I("s_addc_u32 s93, s%d, 0", wsh)
    k.I("s_and_b32 s93, s93, 0xffff")
    k.I("s_mov_b32 s94, 64")
    k.I("s_mov_b32 s95, 0x20000")
def stamp(k, i, vt):
    if not STAMPS: return
    k.I("s_memrealtime s[96:97]")
    k.I("s_waitcnt lgkmcnt(0)")
    k.I("v_mov_b32 v%d, s96", vt)
    k.I("v_mov_b32 v%d, 0", vt + 1)
    k.I("buffer_store_dword v%d, v%d, s[92:95], 0 offen offset:%d", vt, vt + 1, 4 * i)

def descriptor(name, nv, ns, acc):
    if STAMPS: ns = 102
    return """.section .rodata,"a"
.p2align 6
.amdhsa_kernel %s
  .amdhsa_next_free_vgpr %d
  .amdhsa_next_free_sgpr %d
  .amdhsa_accum_offset %d
  .amdhsa_group_segment_fixed_size 0
  .amdhsa_kernarg_size 96
  .amdhsa_user_sgpr_count 2
  .amdhsa_user_sgpr_kernarg_segment_ptr 1
  .amdhsa_system_sgpr_workgroup_id_x 1
.end_amdhsa_kernel
.text
""" % (name, nv, ns, acc)

def kernel_b(U=8, exp=''):
    k = K()
    k.l += [".globl kb_kernel", ".p2align 8", ".type kb_kernel,@function", "kb_kernel:"]
    k.I("s_cmp_ge_u32 s2, 256")
    k.I("s_cbranch_scc1 KB_END")
    if STAMPS: k.I("s_memrealtime s[98:99]")
    k.I("s_load_dwordx2 s[4:5], s[0:1], 0")
    k.I("s_load_dwordx2 s[6:7], s[0:1], 32")
    k.I("s_load_dwordx2 s[8:9], s[0:1], 64")
    k.I("s_load_dwordx2 s[10:11], s[0:1], 72")
    k.I("s_load_dwordx2 s[12:13], s[0:1], 88")
    k.I("v_lshrrev_b32 v1, 6, v0")
    k.I("v_and_b32 v0, 63, v0")
    k.I("v_readfirstlane_b32 s32, v1")
    k.I("s_and_b32 s33, s2, 7")
    k.I("s_lshr_b32 s34, s2, 3")
    k.I("s_and_b32 s35, s34, 3")
    k.I("s_lshr_b32 s36, s34, 2")
    k.I("s_lshl_b32 s33, s33, 2")
    k.I("s_add_u32 s33, s33, s35")
    k.I("s_lshl_b32 s36, s36, 7")
    k.I("s_mul_i32 s37, s32, 43")
    k.I("s_cmp_eq_u32 s32, 3")
    k.I("s_cselect_b32 s38, 1, 0")
    k.I("s_sub_u32 s37, s37, s38")
    k.I("s_cmp_eq_u32 s32, 2")
    k.I("s_cselect_b32 s39, 42, 43")
    VDW, VA, VR = 2, 6, 8
    B0 = 16; A0 = B0 + 16 * U; AC = A0 + 32; VX = AC + 64; NV = VX + 8 + 4
    T = VX + 8
    k.I("v_lshrrev_b32 v%d, 3, v0", T)
    k.I("v_lshlrev_b32 v%d, 10, v%d", VDW, T)
    k.I("v_lshrrev_b32 v%d, 1, v0", T)
    k.I("v_lshrrev_b32 v%d, 4, v0", T + 1)
    k.I("v_xor_b32 v%d, v%d, v%d", T, T, T + 1)
    k.I("v_and_b32 v%d, 3, v%d", T, T)
    k.I("v_lshl_add_u32 v%d, v%d, 5, v%d", VDW, T, VDW)
    k.I("v_and_b32 v%d, 1, v0", T)
    k.I("v_lshl_add_u32 v%d, v%d, 4, v%d", VDW, T, VDW)
    k.I("v_add_u32 v%d, s36, v%d", VDW, VDW)
    for i in range(1, 4): k.I("v_add_u32 v%d, %d, v%d", VDW + i, 7168 * i, VDW)
    k.I("v_lshlrev_b32 v%d, 4, v0", VA)
    k.I("s_mul_i32 s40, s32, %d", U * 4096)
    k.I("v_lshrrev_b32 v%d, 2, v0", T)
    k.I("v_lshlrev_b32 v%d, 7, v%d", T, T)
    k.I("v_and_b32 v%d, 3, v0", T + 1)
    k.I("v_lshl_add_u32 v%d, v%d, 3, v%d", T, T + 1, T)
    k.I("v_add_u32 v%d, s40, v%d", T, T)
    k.I("v_bfe_u32 v%d, v0, 3, 2", T + 1)
    for nt in range(4):
        k.I("v_xor_b32 v%d, %d, v%d", T + 2, nt, T + 1)
        k.I("v_lshl_add_u32 v%d, v%d, 5, v%d", VR + nt, T + 2, T)
    k.I("s_waitcnt lgkmcnt(0)")
    k.I("s_lshl_b32 s41, s37, 15")
    k.I("s_add_u32 s42, s6, s41")
    k.I("s_addc_u32 s43, s7, 0")
    k.I("s_cmp_eq_u32 s32, 3")
    k.I("s_cselect_b32 s42, s8, s42")
    k.I("s_cselect_b32 s43, s9, s43")
    k.I("s_lshl_b32 s44, s39, 15")
    srd(k, 16, 42, 43, "s44")
    k.I("s_mul_i32 s41, s33, %d", NKS)
    k.I("s_add_u32 s41, s41, s37")
    k.I("s_lshl_b32 s41, s41, 12")
    k.I("s_add_u32 s42, s12, s41")
    k.I("s_addc_u32 s43, s13, 0")
    k.I("s_lshl_b32 s44, s39, 12")
    srd(k, 20, 42, 43, "s44")
    srd(k, 24, 4, 5, 2048 * 1024)
    srd(k, 28, 10, 11, 2048 * 1024)
    VO = 12
    k.I("s_lshl_b32 s41, s33, 6")
    k.I("s_lshl_b32 s42, s32, 4")
    k.I("s_add_u32 s41, s41, s42")
    k.I("s_lshl_b32 s41, s41, 10")
    k.I("s_add_u32 s41, s41, s36")
    k.I("v_lshrrev_b32 v%d, 3, v0", T)
    k.I("v_lshlrev_b32 v%d, 10, v%d", VO, T)
    k.I("v_and_b32 v%d, 7, v0", T)
    k.I("v_lshl_add_u32 v%d, v%d, 4, v%d", VO, T, VO)
    k.I("v_add_u32 v%d, s41, v%d", VO, VO)
    k.I("v_add_u32 v%d, 8192, v%d", VO + 1, VO)
    SW, SA = 45, 46
    k.I("s_mov_b32 s%d, 0", SW)
    k.I("s_mov_b32 s%d, 0", SA)
    def loadsW(slot):
        o = ["s_add_u32 m0, s40, %d" % (slot * 4096), "s_nop 0"]
        for i in range(4): o.append("buffer_load_dwordx4 v%d, s[16:19], s%d offen offset:%d lds" % (VDW + i, SW, 1024 * i))
        return o
    def loadB(slot, qt): return "buffer_load_dwordx4 %s, v%d, s[20:23], s%d offen offset:%d" % (vr(B0 + 16 * slot + 4 * qt), VA, SA, 1024 * qt)
    adv = ["s_add_u32 s%d, s%d, 32768" % (SW, SW), "s_add_u32 s%d, s%d, 4096" % (SA, SA)]
    if 'W' in exp: adv.append("s_and_b32 s%d, s%d, 0x1ffff" % (SW, SW))
    if 'A' in exp: adv.append("s_and_b32 s%d, s%d, 0x3fff" % (SA, SA))
    if 'w' in exp: k.I("s_mov_b32 s18, 0")
    if 'a' in exp: k.I("s_mov_b32 s22, 0")
    for s in range(U - 1):
        k.ext(loadsW(s)); k.ext([loadB(s, q) for q in range(4)]); k.ext(adv)
    k.I("buffer_load_dwordx4 %s, v%d, s[24:27], 0 offen", vr(VX), VO)
    k.I("buffer_load_dwordx4 %s, v%d, s[24:27], 0 offen", vr(VX + 4), VO + 1)
    for i in range(64): k.I("v_mov_b32 v%d, 0", AC + i)
    def trreads(slot, aset):
        o = []
        for nt in range(4):
            for e in range(2):
                o.append("ds_read_b64_tr_b16 %s, v%d offset:%d" % (vr(A0 + 16 * aset + 4 * nt + 2 * e, 2), VR + nt, slot * 4096 + e * 2048))
        return o
    k.I("s_waitcnt vmcnt(%d)", 8 * (U - 2) + 2)
    k.ext(trreads(0, 0))
    k.ext(loadsW(U - 1)); k.ext([loadB(U - 1, q) for q in range(4)]); k.ext(adv)
    k.I("s_mov_b32 s47, 0")
    k.L("KB_LOOP")
    assert U % 2 == 0
    for s in range(U):
        aset = s % 2
        nx = (s + 1) % U
        k.I("s_waitcnt vmcnt(%d) lgkmcnt(0)", 8 * (U - 2))
        tr = trreads(nx, 1 - aset)
        lw = loadsW(s)
        fill = [[] for _ in range(16)]
        for i in range(8): fill[i].append(tr[i])
        fill[7].append(lw[0])
        for i in range(4): fill[8 + 2 * i].append(lw[2 + i])
        i = 0
        for qt in range(4):
            for nt in range(4):
                d = AC + 16 * nt + 4 * qt
                k.I("%s %s, %s, %s, %s", MF, vr(d), vr(A0 + 16 * aset + 4 * nt), vr(B0 + 16 * s + 4 * qt), vr(d))
                k.ext(fill[i]); i += 1
        k.ext([loadB(s, q) for q in range(4)])
        k.ext(adv)
        k.I("s_add_u32 s47, s47, 1")
        k.I("s_cmp_ge_u32 s47, s39")
        if s < U - 1: k.I("s_cbranch_scc1 KB_EPI")
        else: k.I("s_cbranch_scc0 KB_LOOP")
    k.L("KB_EPI")
    k.I("s_waitcnt vmcnt(0) lgkmcnt(0)")
    stamp_init(k, 1, 12, 13, 32)
    stamp(k, 1, T)
    k.I("s_nop 7")
    k.I("v_and_b32 v%d, 15, v0", T)
    k.I("v_mul_u32_u24 v%d, 272, v%d", T, T)
    k.I("v_lshrrev_b32 v%d, 4, v0", T + 1)
    k.I("v_lshl_add_u32 v%d, v%d, 4, v%d", T, T + 1, T)
    k.I("v_add_u32 v%d, s40, v%d", T, T)
    for qt in range(4):
        for nt in range(4):
            k.I("ds_write_b128 v%d, %s offset:%d", T, vr(AC + 16 * nt + 4 * qt), qt * 16 * 272 + nt * 64)
    k.I("v_lshrrev_b32 v%d, 3, v0", T)
    k.I("s_lshl_b32 s41, s32, 4")
    k.I("v_add_u32 v%d, s41, v%d", T, T)
    k.I("v_mul_u32_u24 v%d, 272, v%d", T, T)
    k.I("v_and_b32 v%d, 7, v0", T + 1)
    k.I("v_lshl_add_u32 v%d, v%d, 5, v%d", T, T + 1, T)
    k.I("v_add_u32 v%d, %d, v%d", T + 1, 2 * U * 4096, T)
    k.I("s_waitcnt lgkmcnt(0)")
    k.I("s_barrier")
    R0 = B0
    for p in range(2):
        for j in range(4):
            for hh in range(2):
                k.I("ds_read_b128 %s, v%d offset:%d", vr(R0 + 16 * j + 8 * p + 4 * hh), T + (j // 2), (j % 2) * U * 4096 + p * 8 * 272 + hh * 16)
    k.I("s_mov_b32 s41, 0xffff0000")
    k.I("s_mov_b32 s42, 0xbfb8aa3b")
    W = A0
    def rnd(a, b, t):
        k.I("v_cvt_pk_bf16_f32 v%d, v%d, v%d", t, a, b)
        k.I("v_lshlrev_b32 v%d, 16, v%d", a, t)
        k.I("v_and_b32 v%d, s41, v%d", b, t)
    for p in range(2):
        k.I("s_waitcnt lgkmcnt(%d)", 8 if p == 0 else 0)
        S = R0 + 8 * p; F = R0 + 48 + 8 * p
        for i in range(8):
            k.I("v_add_f32 v%d, v%d, v%d", S + i, S + i, S + 16 + i)
        for i in range(8):
            k.I("v_add_f32 v%d, v%d, v%d", S + i, S + i, S + 32 + i)
        for i in range(0, 8, 2):
            rnd(S + i, S + i + 1, W); rnd(F + i, F + i + 1, W + 1)
        for i in range(8): k.I("v_mul_f32 v%d, s42, v%d", W + 2 + i, F + i)
        for i in range(8): k.I("v_exp_f32 v%d, v%d", W + 2 + i, W + 2 + i)
        for i in range(8): k.I("v_add_f32 v%d, 1.0, v%d", W + 2 + i, W + 2 + i)
        for i in range(8): k.I("v_rcp_f32 v%d, v%d", W + 2 + i, W + 2 + i)
        for i in range(8): k.I("v_mul_f32 v%d, v%d, v%d", F + i, F + i, W + 2 + i)
        for i in range(0, 8, 2): rnd(F + i, F + i + 1, W)
        for i in range(8): k.I("v_mul_f32 v%d, v%d, v%d", S + i, S + i, F + i)
        for i in range(0, 8, 2): rnd(S + i, S + i + 1, W)
        for i in range(4):
            k.I("v_lshlrev_b32 v%d, 16, v%d", W, VX + 4 * p + i)
            k.I("v_and_b32 v%d, s41, v%d", W + 1, VX + 4 * p + i)
            k.I("v_add_f32 v%d, v%d, v%d", W, W, S + 2 * i)
            k.I("v_add_f32 v%d, v%d, v%d", W + 1, W + 1, S + 2 * i + 1)
            k.I("v_cvt_pk_bf16_f32 v%d, v%d, v%d", W + 12 + 4 * p + i, W, W + 1)
        k.I("buffer_store_dwordx4 %s, v%d, s[28:31], 0 offen", vr(W + 12 + 4 * p), VO + p)
    if STAMPS:
        k.I("s_waitcnt vmcnt(0)")
        stamp(k, 2, T)
        k.I("v_mov_b32 v%d, s98", T)
        k.I("buffer_store_dword v%d, v%d, s[92:95], 0 offen", T, T + 1)
    k.L("KB_END")
    k.I("s_endpgm")
    assert NV <= 256, NV
    return k.text(), descriptor("kb_kernel", 256, 64, 256), 4 * U * 4096

HEADER = open("cdna_kernels/%s.s.ref" % NAME).read().split("; Override launch")[0]

def assemble(parts, path):
    s = HEADER
    for name, text, desc, lds, grid in parts:
        s += "; @launch kernel=%s grid=(%d,1,1) block=(256,1,1) lds=%d\n" % (name, grid, lds)
    s += '.amdgcn_target "amdgcn-amd-amdhsa--gfx950"\n.text\n'
    seen = set()
    for name, text, desc, lds, grid in parts:
        if name in seen: continue
        seen.add(name)
        s += text
    seen = set()
    for name, text, desc, lds, grid in parts:
        if name in seen: continue
        seen.add(name)
        s += desc
    open(path, "w").write(s)
    import hazard
    e = hazard.check(s)
    for x in e: print("HAZARD line %d -> %d: %s need %d have %d\n    %s\n    %s" % x)
    print("wrote", path, len(s), "bytes; hazards:", len(e))

if __name__ == "__main__":
    if "stamps" in sys.argv: STAMPS = True
    for exp in ("", "WA", "W", "A", "w", "a", "wa"):
        t, d, l = kernel_b(exp=exp)
        assemble([("kb_kernel", t, d, l, 256)], "kb_only%s.s" % ("_" + exp.replace("w","x").replace("a","y") if exp else ""))
    for U in (4, 6):
        t, d, l = kernel_b(U=U)
        assemble([("kb_kernel", t, d, l, 256)], "kb_only_U%d.s" % U)
```

```python
import re, sys
REG = re.compile(r'\b([vas])\[(\d+):(\d+)\]|\b([vas])(\d+)\b|\b(vcc|exec|m0|scc)\b')
def regs(op):
    out = set()
    for m in REG.finditer(op):
        if m.group(1):
            for i in range(int(m.group(2)), int(m.group(3)) + 1): out.add(m.group(1) + str(i))
        elif m.group(4): out.add(m.group(4) + m.group(5))
        else: out.add(m.group(6))
    return out
TRANS = ('v_exp_', 'v_log_', 'v_rcp_', 'v_rsq_', 'v_sqrt_', 'v_sin_', 'v_cos_')
class Ins:
    def __init__(s, text, line):
        s.text = text; s.line = line
        t = text.split(None, 1)
        s.op = t[0]
        rest = t[1] if len(t) > 1 else ''
        ops = [o.strip() for o in rest.split(',')]
        s.ops = ops
        s.w = set(); s.r = set(); s.ws = 1
        s.mfma = s.op.startswith('v_mfma'); s.valu = s.op.startswith('v_') and not s.mfma
        s.trans = s.op.startswith(TRANS)
        s.ds = s.op.startswith('ds_'); s.vmem = s.op.startswith(('buffer_', 'global_', 'flat_'))
        s.salu = s.op.startswith('s_')
        s.A = s.B = s.C = set(); s.data = set(); s.lds_dma = False
        if s.op == 's_nop': s.ws = int(ops[0], 0) + 1
        if s.mfma:
            s.w = regs(ops[0]); s.A = regs(ops[1]); s.B = regs(ops[2]); s.C = regs(ops[3]); s.r = s.A | s.B | s.C
            s.passes = 8 if '32x32x16' in s.op else (4 if '16x16x32' in s.op else 16)
        elif s.valu:
            s.w = regs(ops[0])
            for o in ops[1:]: s.r |= regs(o)
            if s.op.startswith(('v_fmac', 'v_dot2c', 'v_pk_fmac')): s.r |= s.w
            if s.op.startswith('v_permlane') and 'swap' in s.op: s.w |= regs(ops[1]); s.r |= regs(ops[0])
            if s.op.startswith(('v_add_co', 'v_sub_co', 'v_addc_co', 'v_subb_co', 'v_div_scale')): s.w |= regs(ops[1]); s.r -= regs(ops[1]) if len(ops) < 5 else set()
            if s.op.startswith('v_cndmask') and len(ops) == 3: s.r.add('vcc')
            if s.op.startswith('v_cmpx'): s.w.add('exec')
        elif s.ds:
            if 'read' in s.op or 'permute' in s.op or 'swizzle' in s.op:
                s.w = regs(ops[0])
                for o in ops[1:]: s.r |= regs(o.split(' offset')[0])
            else:
                for o in ops: s.r |= regs(o.split(' offset')[0])
        elif s.vmem:
            if re.search(r'\blds\b', rest) or '_lds_' in s.op:
                s.lds_dma = True
                for o in ops: s.r |= regs(o)
                s.r.add('m0')
            elif 'load' in s.op:
                s.w = regs(ops[0])
                for o in ops[1:]: s.r |= regs(o)
            elif 'store' in s.op or 'atomic' in s.op:
                for o in ops: s.r |= regs(o)
                if s.op.startswith('buffer_'): s.data = regs(ops[0])
                else: s.data = regs(ops[1])
        elif s.salu:
            if s.op.startswith(('s_cmp', 's_cbranch', 's_branch', 's_waitcnt', 's_barrier', 's_nop', 's_endpgm', 's_setprio', 's_sleep', 's_bitcmp', 's_setpc')):
                for o in ops: s.r |= regs(o)
            else:
                s.w = regs(ops[0])
                for o in ops[1:]: s.r |= regs(o)
def need(p, c):
    n = 0; why = ''
    def upd(k, w):
        nonlocal n, why
        if k > n: n, why = k, w
    pv = {x for x in p.w if x[0] in 'va' and x not in ('vcc',)}
    if p.valu:
        if c.mfma and pv & c.r: upd(2, 'VALU->MFMA')
        if p.trans and c.valu and not c.trans and pv & c.r: upd(1, 'trans->VALU')
        if c.op.startswith('v_permlane') and pv & c.r: upd(2, 'VALU->permlane')
        if c.op.startswith(('v_readfirstlane', 'v_readlane')) and pv & c.r: upd(1, 'VALU->readlane')
        if 'dpp' in c.text or 'row_' in c.text or 'quad_perm' in c.text:
            if pv & c.r: upd(2, 'VALU->DPP')
        ps = {x for x in p.w if x[0] == 's' or x == 'vcc'}
        if ps:
            if c.valu and ps & c.r: upd(2, 'VALU sgpr->VALU')
            if c.vmem and ps & c.r: upd(5, 'VALU sgpr->VMEM')
        if 'exec' in p.w and c.mfma: upd(4, 'exec->mfma')
    if p.mfma:
        k = {4: 8, 8: 12, 16: 20}[p.passes]
        if c.valu and p.w & (c.r | c.w): upd(k, 'MFMA D->VALU')
        if (c.ds or c.vmem) and p.w & (c.r | c.w): upd(k, 'MFMA D->mem')
        if c.mfma:
            if p.w & (c.A | c.B): upd(k, 'MFMA D->A/B')
            if p.w & c.C and not (p.w == c.C and p.passes == c.passes): upd(k - 2, 'MFMA D->C overlap')
        if c.valu and p.C & c.w: upd({4: 3, 8: 7, 16: 15}[p.passes], 'MFMA C WAR')
    if p.salu and 'm0' in p.w and c.lds_dma: upd(1, 'm0->dma')
    if p.vmem and len(p.data) >= 3 and (p.data & c.w): upd(2 if c.valu else 1, 'store data WAR')
    return n, why
def check_seq(seq, errs):
    for i, c in enumerate(seq):
        dist = 0
        for j in range(i - 1, max(-1, i - 24), -1):
            p = seq[j]
            n, why = need(p, c)
            if n > dist: errs.add((p.line, c.line, why, n, dist, p.text, c.text))
            dist += p.ws
            if dist >= 20: break
def check(text):
    ins = []; labels = {}
    for ln, raw in enumerate(text.splitlines(), 1):
        l = raw.split(';')[0].strip()
        if not l: continue
        if l.endswith(':'): labels[l[:-1]] = len(ins); continue
        if l.startswith('.'): continue
        ins.append(Ins(l, ln))
    errs = set()
    seq = []
    for x in ins:
        seq.append(x)
        if x.op in ('s_endpgm', 's_branch', 's_setpc_b64'):
            check_seq(seq, errs); seq = []
    check_seq(seq, errs)
    for i, x in enumerate(ins):
        if x.op.startswith(('s_cbranch', 's_branch', 's_call')):
            tgt = x.ops[-1]
            if tgt in labels:
                t = labels[tgt]
                pre = []
                for y in reversed(ins[max(0, i - 24):i + 1]):
                    if y is not x and y.op in ('s_endpgm', 's_branch', 's_setpc_b64'): break
                    pre.insert(0, y)
                post = []
                for y in ins[t:t + 24]:
                    post.append(y)
                    if y.op in ('s_endpgm', 's_branch', 's_setpc_b64'): break
                check_seq(pre + post, errs)
    return sorted(errs)
if __name__ == '__main__':
    e = check(open(sys.argv[1]).read())
    for x in e: print("HAZARD line %d -> %d: %s need %d have %d\n    %s\n    %s" % x)
    print("hazards:", len(e))
```

```python
from gen import *
import gen

SLOT = 33792
KOFF = (0, 8448)
VOFF_EVEN = 16896
VOFF_ODD = 25344
CS_LDS = 135168
QSCALE = 0x3e0293ee
import struct, math
QSCALE = struct.unpack("<I", struct.pack("<f", math.log2(math.e) / math.sqrt(128.0)))[0]
THR = 0x49800000

def weave(k, mf, pre, valu):
    for g in range(len(mf)):
        k.I(mf[g]); k.ext(pre[g]); k.ext(valu[g])

def xreduce(k, op, r, t):
    for sw in ("v_permlane32_swap_b32", "v_permlane16_swap_b32"):
        k.I("v_mov_b32 v%d, v%d", t, r)
        k.I("s_nop 1")
        k.I("%s v%d, v%d", sw, r, t)
        k.I("s_nop 1")
        k.I("%s v%d, v%d, v%d", op, r, r, t)

def kernel_a(dumpq=False, shift=4):
    k = K()
    k.l += [".globl ka_kernel", ".p2align 8", ".type ka_kernel,@function", "ka_kernel:"]
    k.I("s_cmp_ge_u32 s2, 256")
    k.I("s_cbranch_scc1 KA_END")
    if gen.STAMPS: k.I("s_memrealtime s[98:99]")
    k.I("s_load_dwordx8 s[4:11], s[0:1], 0")
    k.I("s_load_dwordx4 s[12:15], s[0:1], 48")
    k.I("s_load_dwordx2 s[16:17], s[0:1], 88")
    k.I("v_lshrrev_b32 v1, 6, v0")
    k.I("v_and_b32 v0, 63, v0")
    k.I("v_readfirstlane_b32 s48, v1")
    k.I("s_and_b32 s51, s2, 7")
    k.I("s_lshl_b32 s51, s51, 2")
    k.I("s_bfe_u32 s52, s2, 0x20003")
    k.I("s_add_u32 s49, s51, s52")
    k.I("s_lshr_b32 s50, s2, 5")
    SX, SWQ, SWG, SWU, SK, SV, SACT = 20, 24, 28, 32, 36, 40, 44
    QA = 0
    QACC = 4
    XF = 132
    ONES = 164
    SS = 168
    TMP = 176
    AXR = 184
    AWQ = 188
    AGU = 196
    ACS = 202
    DX = 210
    DWQ = 218
    DGU = 222
    DK = 224
    DV = 226
    VKL, VVL = 228, 229
    VKR, VVR = 230, 231
    VL16 = 232
    MASK = 233
    T0 = 236
    FACC = 0
    SUMA = 96
    CSA = 112
    AF = 128
    g_, r_, c_, i_ = T0, T0 + 1, T0 + 2, T0 + 3
    k.I("v_lshrrev_b32 v%d, 4, v0", g_)
    k.I("v_bfe_u32 v%d, v0, 2, 2", r_)
    k.I("v_and_b32 v%d, 3, v0", c_)
    k.I("v_and_b32 v%d, 15, v0", i_)
    k.I("v_lshlrev_b32 v%d, 4, v0", VL16)
    t4, t5, t6 = T0 + 4, T0 + 5, T0 + 6
    k.I("s_lshl_b32 s53, s50, 8")
    k.I("s_lshl_b32 s54, s48, 6")
    k.I("s_add_u32 s53, s53, s54")
    k.I("s_lshl_b32 s53, s53, 10")
    k.I("v_lshrrev_b32 v%d, 3, v0", t4)
    k.I("v_lshlrev_b32 v%d, 10, v%d", t4, t4)
    k.I("v_add_u32 v%d, s53, v%d", t4, t4)
    k.I("v_and_b32 v%d, 7, v0", t5)
    k.I("v_xor_b32 v%d, v%d, v%d", t5, t5, g_)
    k.I("v_xor_b32 v%d, 4, v%d", t6, t5)
    for i in range(8):
        k.I("v_lshl_add_u32 v%d, v%d, 4, v%d", DX + i, t5 if i % 2 == 0 else t6, t4)
        if i: k.I("v_add_u32 v%d, %d, v%d", DX + i, 8192 * i - 1024 * (i % 4), DX + i)
    k.I("s_lshl_b32 s53, s48, 17")
    k.I("s_lshl_b32 s54, s49, 8")
    k.I("s_add_u32 s53, s53, s54")
    k.I("v_lshlrev_b32 v%d, 13, v%d", t4, g_)
    k.I("v_add_u32 v%d, s53, v%d", t4, t4)
    k.I("v_xor_b32 v%d, v%d, v%d", t5, r_, g_)
    k.I("v_lshl_add_u32 v%d, v%d, 6, v%d", t4, t5, t4)
    k.I("v_lshl_add_u32 v%d, v%d, 4, v%d", DWQ, c_, t4)
    for i in range(1, 4): k.I("v_add_u32 v%d, %d, v%d", DWQ + i, (32768 - 1024) * i, DWQ)
    k.I("s_mul_i32 s53, s48, %d", 16 * 2752)
    k.I("s_mul_i32 s54, s49, 96")
    k.I("s_add_u32 s53, s53, s54")
    k.I("v_lshrrev_b32 v%d, 3, v0", t4)
    k.I("v_mul_u32_u24 v%d, 2752, v%d", t4, t4)
    k.I("v_add_u32 v%d, s53, v%d", t4, t4)
    k.I("v_and_b32 v%d, 1, v0", t5)
    k.I("v_lshl_add_u32 v%d, v%d, 4, v%d", t4, t5, t4)
    k.I("v_bfe_u32 v%d, v0, 1, 2", t5)
    k.I("v_and_b32 v%d, 1, v%d", t6, g_)
    k.I("v_xor_b32 v%d, v%d, v%d", t5, t5, t6)
    k.I("v_lshl_add_u32 v%d, v%d, 5, v%d", DGU, t5, t4)
    k.I("v_xor_b32 v%d, 2, v%d", t5, t5)
    k.I("v_lshl_add_u32 v%d, v%d, 5, v%d", DGU + 1, t5, t4)
    k.I("v_add_u32 v%d, %d, v%d", DGU + 1, 8 * 2752 - 1024, DGU + 1)
    k.I("s_waitcnt lgkmcnt(0)")
    srd(k, SX, 4, 5, 2048 * 1024)
    srd(k, SWQ, 10, 11, 512 * 8192)
    srd(k, SWG, 12, 13, 512 * 2752)
    srd(k, SWU, 14, 15, 512 * 2752)
    WSLOT = (65536, 98304, 0)
    XSLOT = (32768, 131072)
    k.I("s_lshl_b32 s55, s48, 13")
    k.I("s_lshl_b32 s56, s48, 12")
    k.I("s_lshl_b32 s57, s48, 11")
    def dmaX(c):
        o = []
        for i in range(8):
            if i % 4 == 0: o.append(("s", "s_add_u32 m0, s55, %d" % (XSLOT[c % 2] + 4096 * (i // 4))))
            if i == 0: o.append(("s", "s_mov_b32 s58, %d" % (128 * c)))
            o.append(("d", "buffer_load_dwordx4 v%d, s[%d:%d], s58 offen offset:%d lds" % (DX + i, SX, SX + 3, 1024 * (i % 4))))
        return o
    def dmaW(c):
        b = WSLOT[c % 3]
        o = [("s", "s_add_u32 m0, s56, %d" % b), ("s", "s_mov_b32 s59, %d" % (c * 64 * 8192))]
        for i in range(4): o.append(("d", "buffer_load_dwordx4 v%d, s[%d:%d], s59 offen offset:%d lds" % (DWQ + i, SWQ, SWQ + 3, 1024 * i)))
        o += [("s", "s_add_u32 m0, s57, %d" % (b + 16384)), ("s", "s_mov_b32 s60, %d" % (c * 64 * 2752))]
        for j in range(2): o.append(("d", "buffer_load_dwordx4 v%d, s[%d:%d], s60 offen offset:%d lds" % (DGU + j, SWG, SWG + 3, 1024 * j)))
        o += [("s", "s_add_u32 m0, s57, %d" % (b + 24576)), ("s", "s_nop 0")]
        for j in range(2): o.append(("d", "buffer_load_dwordx4 v%d, s[%d:%d], s60 offen offset:%d lds" % (DGU + j, SWU, SWU + 3, 1024 * j)))
        return o
    def emit_now(o):
        for j, (t, x) in enumerate(o):
            k.I(x)
            if 'm0' in x and o[j + 1][0] == 'd': k.I("s_nop 0")
    emit_now(dmaX(0)); emit_now(dmaW(0)); emit_now(dmaX(1)); emit_now(dmaW(1)); emit_now(dmaW(2))
    k.I("s_lshl_b32 s53, s49, 19")
    k.I("s_add_u32 s62, s6, s53")
    k.I("s_addc_u32 s63, s7, 0")
    srd(k, SK, 62, 63, 524288)
    k.I("s_add_u32 s62, s8, s53")
    k.I("s_addc_u32 s63, s9, 0")
    k.I("s_sub_u32 s62, s62, 8192")
    k.I("s_subb_u32 s63, s63, 0")
    srd(k, SV, 62, 63, 524288 + 8192)
    srd(k, SACT, 16, 17, ACT_BYTES)
    stamp_init(k, 0, 16, 17, 48)
    k.I("v_lshrrev_b32 v%d, 1, v%d", t4, i_)
    k.I("v_xor_b32 v%d, v%d, v%d", t4, t4, g_)
    k.I("v_lshlrev_b32 v%d, 7, v%d", t5, i_)
    k.I("v_add_u32 v%d, s55, v%d", t5, t5)
    for ks in range(2):
        k.I("v_xor_b32 v%d, %d, v%d", t6, 4 * ks, t4)
        k.I("v_lshl_add_u32 v%d, v%d, 4, v%d", t6, t6, t5)
        for sl in range(2): k.I("v_add_u32 v%d, %d, v%d", AXR + 2 * sl + ks, XSLOT[sl], t6)
    k.I("v_lshl_add_u32 v%d, v%d, 3, v%d", t4, g_, r_)
    k.I("v_lshlrev_b32 v%d, 8, v%d", t5, t4)
    k.I("v_lshl_add_u32 v%d, v%d, 4, v%d", t5, c_, t5)
    for ksd in range(4):
        k.I("v_xor_b32 v%d, %d, v%d", t6, ksd, r_)
        k.I("v_lshl_add_u32 v%d, v%d, 6, v%d", AWQ + ksd, t6, t5)
        k.I("v_add_u32 v%d, 65536, v%d", AWQ + 4 + ksd, AWQ + ksd)
    k.I("v_xor_b32 v%d, s48, v%d", t6, r_)
    k.I("v_lshl_add_u32 v%d, v%d, 6, v%d", ACS, t6, t5)
    k.I("v_add_u32 v%d, 8, v%d", ACS + 1, ACS)
    k.I("v_lshlrev_b32 v%d, 7, v%d", t5, t4)
    k.I("v_lshl_add_u32 v%d, v%d, 3, v%d", t5, c_, t5)
    k.I("v_add_u32 v%d, 16384, v%d", t5, t5)
    k.I("v_bfe_u32 v%d, v0, 3, 2", t4)
    for ft in range(3):
        k.I("v_xor_b32 v%d, %d, v%d", t6, ft, t4)
        k.I("v_lshl_add_u32 v%d, v%d, 5, v%d", AGU + ft, t6, t5)
        k.I("v_add_u32 v%d, 65536, v%d", AGU + 3 + ft, AGU + ft)
    k.I("s_min_u32 s53, s48, 2")
    k.I("v_xor_b32 v%d, s53, v%d", t6, t4)
    k.I("v_lshl_add_u32 v%d, v%d, 5, v%d", ACS + 2, t6, t5)
    k.I("v_add_u32 v%d, 8192, v%d", ACS + 3, ACS + 2)
    for j in range(4): k.I("v_add_u32 v%d, 65536, v%d", ACS + 4 + j, ACS + j)
    k.I("s_lshl_b32 s53, s48, 11")
    k.I("v_lshlrev_b32 v%d, 8, v%d", t4, g_)
    k.I("v_add_u32 v%d, s53, v%d", t4, t4)
    k.I("v_xor_b32 v%d, v%d, v%d", t5, i_, g_)
    k.I("v_lshl_add_u32 v%d, v%d, 4, v%d", DK, t5, t4)
    k.I("v_add_u32 v%d, 8192, v%d", DK + 1, DK)
    k.I("s_lshr_b32 s53, s48, 1")
    k.I("s_lshl_b32 s53, s53, 3")
    k.I("s_and_b32 s54, s48, 1")
    k.I("s_lshl_b32 s54, s54, 1")
    k.I("s_add_u32 s53, s53, s54")
    k.I("s_lshl_b32 s53, s53, 8")
    k.I("v_lshrrev_b32 v%d, 1, v%d", t4, g_)
    k.I("v_lshlrev_b32 v%d, 12, v%d", t4, t4)
    k.I("v_and_b32 v%d, 1, v%d", t5, g_)
    k.I("v_lshl_add_u32 v%d, v%d, 10, v%d", t4, t5, t4)
    k.I("v_lshl_add_u32 v%d, v%d, 4, v%d", t4, i_, t4)
    k.I("v_add_u32 v%d, s53, v%d", DV, t4)
    k.I("v_add_u32 v%d, 8192, v%d", DV + 1, DV)
    k.I("v_mul_u32_u24 v%d, 2112, v%d", t4, r_)
    k.I("v_lshl_add_u32 v%d, v%d, 8, v%d", t4, c_, t4)
    k.I("v_xor_b32 v%d, v%d, v%d", t5, g_, c_)
    k.I("v_lshl_add_u32 v%d, v%d, 4, v%d", VKL, t5, t4)
    k.I("v_bfe_u32 v%d, v0, 2, 3", t4)
    k.I("v_mul_u32_u24 v%d, 1056, v%d", t4, t4)
    k.I("v_lshrrev_b32 v%d, 5, v0", t5)
    k.I("v_lshl_add_u32 v%d, v%d, 9, v%d", t4, t5, t4)
    k.I("v_lshl_add_u32 v%d, v%d, 3, v%d", VVL, c_, t4)
    k.I("s_mul_i32 s61, s48, 2112")
    k.I("v_mov_b32 v%d, 0xffff0000", MASK)
    for i in range(4): k.I("v_mov_b32 v%d, 0x3f803f80", ONES + i)
    for i in range(8): k.I("v_mov_b32 v%d, 0", SS + i)
    def dmaKV(j, mbase, soff, skip_odd=False):
        ms, mc = mbase
        o = []
        if soff is None:
            o.append(("s", "s_mov_b32 s64, %d" % (j * 16384))); soff = "s64"
        for sub in range(2):
            o.append(("s", "s_add_u32 m0, %s, %d" % (ms, mc + KOFF[sub])))
            for e in range(2): o.append(("d", "buffer_load_dwordx4 v%d, s[%d:%d], %s offen offset:%d lds" % (DK + sub, SK, SK + 3, soff, 1024 * e)))
        for sub, off in ((0, VOFF_ODD), (1, VOFF_EVEN)):
            if sub == 0 and skip_odd: continue
            for e in range(2):
                o.append(("s", "s_add_u32 m0, %s, %d" % (ms, mc + off + 800 * e)))
                o.append(("d", "buffer_load_dwordx4 v%d, s[%d:%d], %s offen offset:%d lds" % (DV + sub, SV, SV + 3, soff, 256 * e)))
        return o
    def areads(T, s):
        c, ks = s // 2, s % 2
        b = WSLOT[c % 3]; st = 1 if b >= 65536 else 0; b -= 65536 * st
        o = []
        for e in range(2):
            d = ar(AF + 4 * T + 2 * e, 2)
            if T < 8: o.append("ds_read_b64_tr_b16 %s, v%d offset:%d" % (d, AWQ + 4 * st + (T >> 1), b + (32 * ks + 4 * e) * 256 + 8 * (T & 1)))
            elif T < 14: o.append("ds_read_b64_tr_b16 %s, v%d offset:%d" % (d, AGU + 3 * st + ((T - 8) >> 1), b + (32 * ks + 4 * e) * 128 + 8192 * ((T - 8) & 1)))
            elif T < 16: o.append("ds_read_b64_tr_b16 %s, v%d offset:%d" % (d, ACS + 4 * st + (T - 14), b + (32 * ks + 4 * e) * 256))
            else: o.append("ds_read_b64_tr_b16 %s, v%d offset:%d" % (d, ACS + 4 * st + (T - 14), b + (32 * ks + 4 * e) * 128))
        return o
    def xreads(s):
        c, ks = s // 2, s % 2
        return ["ds_read_b128 %s, v%d offset:%d" % (vr(XF + 16 * (s % 2) + 4 * qt), AXR + 2 * (c % 2) + ks, 2048 * qt) for qt in range(4)]
    k.I("s_waitcnt vmcnt(24)")
    k.I("s_barrier")
    stamp(k, 1, 250)
    k.ext(xreads(0))
    for T in range(18):
        k.ext(areads(T, 0))
        if T % 4 == 3: k.I("s_waitcnt lgkmcnt(4)")
    k.I("s_waitcnt lgkmcnt(0)")
    extra_vm = 1 if gen.STAMPS else 0
    for s in range(16):
        xs = XF + 16 * (s % 2)
        if s % 2 == 1 and s < 15:
            c = (s + 1) // 2
            n = 8
            if c == 7: n = 6
            if c == 1: n += extra_vm
            k.I("s_waitcnt vmcnt(%d) lgkmcnt(0)", n)
            k.I("s_barrier")
        mf = []; pre = [[] for _ in range(64)]; va = [[] for _ in range(64)]
        order = [14, 15, 16, 17] + list(range(14))
        first = (s == 0)
        last_use = {}
        for T in order:
            if T >= 14:
                d = ar(CSA + 4 * (T - 14))
                mf.append("%s %s, %s, %s, %s" % (MF, d, ar(AF + 4 * T), vr(ONES), "0" if first else d))
            else:
                for qt in range(4):
                    d = vr(QACC + 16 * T + 4 * qt) if T < 8 else ar(FACC + 16 * (T - 8) + 4 * qt)
                    mf.append("%s %s, %s, %s, %s" % (MF, d, ar(AF + 4 * T), vr(xs + 4 * qt), "0" if first else d))
            last_use[T] = len(mf) - 1
        for qt in range(4):
            d = ar(SUMA + 4 * qt)
            mf.append("%s %s, %s, %s, %s" % (MF, d, vr(ONES), vr(xs + 4 * qt), "0" if first else d))
        assert len(mf) == 64
        cap = [2] * 64
        if s < 15:
            q = []
            for T in order:
                for x in areads(T, s + 1): q.append((last_use[T], x))
            xr = xreads(s + 1)
            q = q[:8] + [(4, x) for x in xr] + q[8:]
            g = 0
            for lu, x in q:
                g = max(g, lu)
                assert g < 64
                pre[g].append(x); cap[g] -= 1; g += 1
        dm = []
        if s % 2 == 1 or s >= 2:
            c = (s + 1) // 2 if s % 2 == 1 else s // 2
            al = []
            if c >= 1:
                if c + 1 <= 7: al += dmaX(c + 1)
                if c + 2 <= 7: al += dmaW(c + 2)
                if c == 6: al += dmaKV(0, ("s61", 0), None, skip_odd=True)
                if c == 7: al += dmaKV(1, ("s61", SLOT), None)
            nd = sum(1 for t, _ in al if t == 'd')
            half = (nd + 1) // 2
            cnt = 0; a1 = []; a2 = []
            for t, x in al:
                (a1 if cnt < half else a2).append((t, x))
                if t == 'd': cnt += 1
            if s < 15: dm = a1 if s % 2 == 1 else a2
        gmin = 0; pend = []
        for t, x in dm:
            if t == 's': pend.append(x)
            else:
                g = gmin + len(pend)
                while cap[g] != 2: g += 1
                for j, sx in enumerate(pend): pre[g - len(pend) + j].insert(0, sx)
                pre[g].append(x); cap[g] = 0
                pend = []; gmin = g + 2
        assert not pend
        for g in (3, 19, 35, 51): pre[g].insert(0, "s_waitcnt lgkmcnt(%d)" % (6 if s < 15 else 0))
        ops = []
        for qt in range(4):
            for d in range(4):
                tt = TMP + 2 * ((4 * qt + d) % 4)
                ops += ["v_lshlrev_b32 v%d, 16, v%d" % (tt, xs + 4 * qt + d), "v_and_b32 v%d, v%d, v%d" % (tt + 1, MASK, xs + 4 * qt + d),
                        "v_fmac_f32 v%d, v%d, v%d" % (SS + 2 * qt, tt, tt), "v_fmac_f32 v%d, v%d, v%d" % (SS + 2 * qt + 1, tt + 1, tt + 1)]
        g = 0
        for x in ops:
            while g < 63 and cap[g] <= 0: g += 1
            va[g].append(x); cap[g] -= 1
        weave(k, mf, pre, va)
    stamp(k, 2, 250)
    k.I("s_nop 7")
    k.I("s_barrier")
    emit_now(dmaKV(2, ("s61", 2 * SLOT), None))
    emit_now(dmaKV(3, ("s61", 3 * SLOT), None))
    k.I("s_lshl_b32 s53, s48, 7")
    k.I("v_lshlrev_b32 v%d, 4, v%d", t4, g_)
    k.I("v_add_u32 v%d, %d, v%d", t4, CS_LDS, t4)
    k.I("v_add_u32 v%d, s53, v%d", t5, t4)
    k.I("s_min_u32 s53, s48, 2")
    k.I("s_lshl_b32 s53, s53, 7")
    k.I("v_add_u32 v%d, s53, v%d", t6, t4)
    k.I("ds_write_b128 v%d, %s", t5, ar(CSA))
    k.I("ds_write_b128 v%d, %s offset:64", t5, ar(CSA + 4))
    k.I("ds_write_b128 v%d, %s offset:512", t6, ar(CSA + 8))
    k.I("ds_write_b128 v%d, %s offset:576", t6, ar(CSA + 12))
    RA, RB = 184, 188
    RA2, RB2 = 192, 196
    k.I("s_mov_b32 s53, 0x3b000000")
    k.I("s_mov_b32 s54, 0x3727c5ac")
    k.I("s_mov_b32 s62, 0x%x", QSCALE)
    u0, u1, u2 = TMP, TMP + 1, TMP + 2
    def rbf(r):
        k.I("v_cvt_pk_bf16_f32 v%d, v%d, v%d", r, r, r)
        k.I("v_and_b32 v%d, v%d, v%d", r, MASK, r)
    for qt in range(4):
        ss = SS + 2 * qt
        k.I("v_add_f32 v%d, v%d, v%d", ss, ss, ss + 1)
        xreduce(k, "v_add_f32", ss, u0)
        k.I("v_accvgpr_read_b32 v%d, a%d", u0, SUMA + 4 * qt)
        k.I("v_mul_f32 v%d, s53, v%d", u0, u0)
        k.I("v_mul_f32 v%d, s53, v%d", ss, ss)
        k.I("v_fma_f32 v%d, -v%d, v%d, v%d", ss, u0, u0, ss)
        k.I("v_max_f32 v%d, 0, v%d", ss, ss)
        rbf(ss)
        k.I("v_add_f32 v%d, s54, v%d", ss, ss)
        rbf(ss)
        k.I("v_sqrt_f32 v%d, v%d", ss, ss)
        k.I("s_nop 0")
        rbf(ss)
        k.I("v_rcp_f32 v%d, v%d", RA + qt, ss)
        rbf(u0)
        k.I("v_mul_f32 v%d, v%d, v%d", RB + qt, u0, RA + qt)
        k.I("v_sub_f32 v%d, 0, v%d", RB + qt, RB + qt)
        k.I("v_mul_f32 v%d, s62, v%d", RA2 + qt, RA + qt)
        k.I("v_mul_f32 v%d, s62, v%d", RB2 + qt, RB + qt)
    k.I("s_waitcnt lgkmcnt(0)")
    k.I("s_barrier")
    CS = XF
    CSF = 200
    for T in range(8): k.I("ds_read_b128 %s, v%d offset:%d", vr(CS + 4 * T), t4, 64 * T)
    for T in range(6): k.I("ds_read_b128 %s, v%d offset:%d", vr(CSF + 4 * T), t4, 512 + 64 * T)
    k.I("s_waitcnt lgkmcnt(6)")
    QF = 128
    for q4 in range(4):
        for T in range(8):
            a = QACC + 16 * T + 4 * q4
            for r in range(4):
                k.I("v_mul_f32 v%d, v%d, v%d", TMP + r, CS + 4 * T + r, RB2 + q4)
            for r in range(4):
                k.I("v_fma_f32 v%d, v%d, v%d, v%d", TMP + r, a + r, RA2 + q4, TMP + r)
            k.I("v_cvt_pk_bf16_f32 v%d, v%d, v%d", TMP + 4, TMP, TMP + 1)
            k.I("v_cvt_pk_bf16_f32 v%d, v%d, v%d", TMP + 5, TMP + 2, TMP + 3)
            d = QF + 16 * q4 + 4 * (T >> 1) + 2 * (T & 1)
            k.I("v_accvgpr_write_b32 a%d, v%d", d, TMP + 4)
            k.I("v_accvgpr_write_b32 a%d, v%d", d + 1, TMP + 5)
    k.I("s_waitcnt lgkmcnt(0)")
    k.I("s_lshl_b32 s53, s50, 2")
    k.I("s_add_u32 s53, s53, s48")
    k.I("s_mul_i32 s65, s53, %d", NKS * 4096)
    for ft in range(3):
        k.I("s_mul_i32 s53, s49, 3")
        k.I("s_add_u32 s53, s53, %d", ft)
        k.I("s_lshr_b32 s54, s53, 1")
        k.I("s_lshl_b32 s54, s54, 12")
        k.I("s_and_b32 s63, s53, 1")
        k.I("s_lshl_b32 s63, s63, 3")
        k.I("s_add_u32 s54, s54, s63")
        k.I("s_add_u32 s54, s54, s65")
        k.I("s_add_u32 s54, s54, %d", 128 * 4096)
        k.I("s_cmp_lt_u32 s53, 86")
        k.I("s_cselect_b32 s66, s54, 0x7f000000")
        for q4 in range(4):
            H = 4 + 16 * ((ft * 4 + q4) % 4)
            for up in range(2):
                a = FACC + 16 * (2 * ft + up) + 4 * q4
                for r in range(4): k.I("v_accvgpr_read_b32 v%d, a%d", H + 4 * up + r, a + r)
                for r in range(4): k.I("v_mul_f32 v%d, v%d, v%d", H + 8 + r, CSF + 4 * (2 * ft + up) + r, RB + q4)
                for r in range(4): k.I("v_fma_f32 v%d, v%d, v%d, v%d", H + 4 * up + r, H + 4 * up + r, RA + q4, H + 8 + r)
            for r in range(4): k.I("v_mul_f32 v%d, v%d, v%d", H + r, H + r, H + 4 + r)
            k.I("v_cvt_pk_bf16_f32 v%d, v%d, v%d", H + 12, H, H + 1)
            k.I("v_cvt_pk_bf16_f32 v%d, v%d, v%d", H + 13, H + 2, H + 3)
            k.I("buffer_store_dwordx2 %s, v%d, s[%d:%d], s66 offen offset:%d", vr(H + 12, 2), VL16, SACT, SACT + 3, 1024 * q4)
    stamp(k, 3, 250)
    if dumpq:
        k.I("s_add_u32 s62, s16, 0x2000000")
        k.I("s_addc_u32 s63, s17, 0")
        srd(k, 68, 62, 63, 16 << 20)
        k.I("s_lshl_b32 s53, s2, 2")
        k.I("s_add_u32 s53, s53, s48")
        k.I("s_lshl_b32 s53, s53, 14")
        for f in range(16):
            k.I("buffer_store_dwordx4 %s, v%d, s[68:71], s53 offen offset:%d", ar(QF + 4 * f), VL16, 1024 * (f % 4))
            if f % 4 == 3: k.I("s_add_u32 s53, s53, 4096")
        k.I("s_waitcnt vmcnt(0)")
    def Sreg(buf, h, qt, kt): return 32 + 32 * buf + 16 * h + 8 * qt + 4 * kt
    NM = 96; PP = 112; EE = 192; TS = 200; LL = 204; VTHR = 208; VMX = 209; RT = 210
    E = lambda i: EE + (i % 8)
    def fr(p, kind, i):
        t, b = {(0, 'K'): ('a', 192), (0, 'V'): ('a', 224), (1, 'K'): ('v', 128), (1, 'V'): ('v', 160)}[(p, kind)]
        return t, b + 4 * i
    def R(t, n=4): return vr(t[1], n, t[0])
    def kreads(p, sub): return ["ds_read_b128 %s, v%d offset:%d" % (R(fr(p, 'K', i)), VKR, KOFF[sub] + (i // 4) * 1024 + (i % 4) * 64) for i in range(8)]
    def vreads(p, off):
        o = []
        for i in range(16):
            t = fr(p, 'V', i // 2)
            o.append("ds_read_b64_tr_b16 %s, v%d offset:%d" % (R((t[0], t[1] + 2 * (i % 2)), 2), VVR, off + (i % 2) * 256 + (i // 2) * 32))
        return o
    def qk(p, buf, h, c0=None):
        m = []
        for qt in range(2):
            for kt in range(2):
                d = Sreg(buf, h, qt, kt)
                for ks in range(4):
                    c = (vr(NM + 8 * h + 4 * qt) if c0 is None else c0) if ks == 0 else vr(d)
                    m.append("%s %s, %s, %s, %s" % (MF, vr(d), R(fr(p, 'K', kt * 4 + ks)), ar(QF + 32 * h + 16 * qt + 4 * ks), c))
        return m
    def pv(p, h):
        m = []
        for dt in range(8):
            for qt in range(2):
                acc = 64 * h + 32 * qt + 4 * dt
                m.append("%s %s, %s, %s, %s" % (MF, ar(acc), R(fr(p, 'V', dt)), vr(PP + 8 * h + 4 * qt), ar(acc)))
        return m
    def sm_stream(buf, h):
        o = []; P = PP + 8 * h; S = Sreg(buf, h, 0, 0)
        for e in range(17):
            if e < 16: o.append((2 * e, "v_exp_f32 v%d, v%d" % (E(e), S + e)))
            kk = e - 1
            if kk >= 0:
                ts = TS + 2 * h + kk // 8
                if kk % 8 == 1: o.append((2 * e + 1, "v_add_f32 v%d, v%d, v%d" % (ts, E(kk - 1), E(kk))))
                elif kk % 8 > 1: o.append((2 * e + 1, "v_add_f32 v%d, v%d, v%d" % (ts, E(kk), ts)))
                if kk % 2 == 1: o.append((2 * e + 1, "v_cvt_pk_bf16_f32 v%d, v%d, v%d" % (P + kk // 2, E(kk - 1), E(kk))))
        o.append((35, "v_max_f32 v%d, v%d, v%d" % (VMX, TS + 2 * h, TS + 2 * h + 1)))
        o.append((39, "v_cmp_gt_f32 vcc, v%d, v%d" % (VMX, VTHR)))
        return o
    nst = 12 + extra_vm * 2
    k.I("s_waitcnt vmcnt(%d)", 8 + 16 + nst)
    k.I("s_barrier")
    k.I("v_mov_b32 v%d, v%d", VKR, VKL)
    k.I("v_mov_b32 v%d, v%d", VVR, VVL)
    k.ext(kreads(1, 0)); k.I("s_waitcnt lgkmcnt(4)")
    k.ext(kreads(0, 1)); k.I("s_waitcnt lgkmcnt(4)")
    vv = vreads(0, VOFF_EVEN)
    k.ext(vv[:8]); k.I("s_waitcnt lgkmcnt(4)"); k.ext(vv[8:])
    for i in range(128): k.I("v_accvgpr_write_b32 a%d, 0", i)
    for i in range(4): k.I("v_mov_b32 v%d, 0", LL + i)
    k.I("v_mov_b32 v%d, 0x%x", VTHR, THR)
    k.I("s_waitcnt lgkmcnt(0)")
    for h in range(2): k.ext(qk(1, 0, h, c0="0"))
    k.I("s_nop 7")
    for q4 in range(4):
        S = Sreg(0, q4 // 2, q4 % 2, 0)
        k.I("v_max3_f32 v%d, v%d, v%d, v%d", RT, S, S + 1, S + 2)
        k.I("v_max3_f32 v%d, v%d, v%d, v%d", RT, RT, S + 3, S + 4)
        k.I("v_max3_f32 v%d, v%d, v%d, v%d", RT, RT, S + 5, S + 6)
        k.I("v_max_f32 v%d, v%d, v%d", RT, RT, S + 7)
        xreduce(k, "v_max_f32", RT, RT + 1)
        for i in range(4): k.I("v_sub_f32 v%d, 0, v%d", NM + 4 * q4 + i, RT)
        for i in range(8): k.I("v_sub_f32 v%d, v%d, v%d", S + i, S + i, RT)
    NG = 128
    for g, x in sm_stream(0, 0):
        if 96 + shift + g < NG:
            k.I(x)
            if x.startswith("v_exp"): k.I("s_nop 0")
    SRD_, SMD, SOF, SCN = 72, 73, 74, 75
    k.I("s_mov_b32 s%d, %d", SRD_, SLOT)
    k.I("s_mov_b32 s%d, s61", SMD)
    k.I("s_add_u32 s76, s61, %d", 4 * SLOT)
    k.I("s_mov_b32 s%d, %d", SOF, 4 * 16384)
    k.I("s_mov_b32 s%d, 0", SCN)
    k.I("v_add_u32 v%d, s%d, v%d", VKR, SRD_, VKL)
    k.I("v_add_u32 v%d, s%d, v%d", VVR, SRD_, VVL)
    k.I("s_waitcnt vmcnt(%d)", 16 + nst)
    stamp(k, 4, 250)
    if gen.STAMPS: k.I("s_waitcnt vmcnt(0)")
    k.I("s_barrier")
    mf = [None] * NG; pre = [[] for _ in range(NG)]; va = [[] for _ in range(NG)]
    rare = []
    for p in range(2):
        for h in range(2):
            base = (2 * p + h) * 32
            m = qk(p, 1 - p, h) + pv(p, h)
            for g in range(32): mf[base + g] = m[g]
            o = 1 - h
            buf = p if h == 0 else 1 - p
            for g, x in sm_stream(buf, o): va[(base + shift + g) % NG].append(x)
            lab = "KA_R%d%d" % (p, h)
            gb = (base + 32 + 15) % NG
            pre[gb] += ["s_cbranch_vccnz %s" % lab, lab + "B:"]
            rare.append((lab, o, buf))
            va[(base + 32 + 19) % NG].append("v_add_f32 v%d, v%d, v%d" % (LL + 2 * o, TS + 2 * o, LL + 2 * o))
            va[(base + 32 + 23) % NG].append("v_add_f32 v%d, v%d, v%d" % (LL + 2 * o + 1, TS + 2 * o + 1, LL + 2 * o + 1))
    def cost(x): return 2 if x.startswith("v_exp") else 1
    cap = [2 - sum(cost(x) for x in va[g]) for g in range(NG)]
    for p in range(2):
        ds = kreads(1 - p, p) + vreads(1 - p, VOFF_ODD if p == 0 else VOFF_EVEN)
        lo, hi = p * 64 + 1, p * 64 + 58
        cand = [g for g in range(lo, hi) if cap[g] >= 1]
        more = [g for g in range(lo, hi) if cap[g] < 1 and g % 2 == 1]
        need = len(ds) - len(cand)
        if need > 0:
            stepm = len(more) / need
            cand += [more[int(j * stepm)] for j in range(need)]
        cand = sorted(cand)[:len(ds)]
        for g, x in zip(cand, ds):
            pre[g].insert(0, x); cap[g] -= 1
        pre[p * 64 + 62].append("s_waitcnt lgkmcnt(0)")
    dm = dmaKV(0, ("s%d" % SMD, 0), "s%d" % SOF)
    gd = 6; pend = []
    for t, x in dm:
        if t == 's': pend.append(x)
        else:
            for j, sx in enumerate(pend): pre[gd - 2 * (len(pend) - j)].append(sx)
            pre[gd].append(x); pend = []
            gd += 14
    book = ["s_add_u32 s%d, s%d, 16384" % (SOF, SOF), "s_add_u32 s%d, s%d, %d" % (SMD, SMD, SLOT), "s_cmp_ge_u32 s%d, s76" % SMD, "s_cselect_b32 s%d, s61, s%d" % (SMD, SMD),
            "s_add_u32 s%d, s%d, %d" % (SRD_, SRD_, SLOT), "s_cmp_ge_u32 s%d, %d" % (SRD_, 4 * SLOT), "s_cselect_b32 s%d, 0, s%d" % (SRD_, SRD_),
            "s_add_u32 s%d, s%d, 1" % (SCN, SCN)]
    for j, x in enumerate(book): pre[108 + 2 * j].append(x)
    va[125].append("v_add_u32 v%d, s%d, v%d" % (VKR, SRD_, VKL))
    va[127].append("v_add_u32 v%d, s%d, v%d" % (VVR, SRD_, VVL))
    pre[124].append("s_waitcnt vmcnt(16)")
    pre[126].append("s_cmp_lt_u32 s%d, 32" % SCN)
    k.l.append(".p2align 6")
    k.L("KA_LOOP")
    weave(k, mf, pre, va)
    k.I("s_barrier")
    k.I("s_cbranch_scc1 KA_LOOP")
    stamp(k, 5, 250)
    k.I("s_nop 7")
    k.I("s_lshl_b32 s53, s49, 14")
    k.I("s_add_u32 s53, s53, s65")
    for q4 in range(4):
        xreduce(k, "v_add_f32", LL + q4, RT)
        k.I("v_rcp_f32 v%d, v%d", LL + q4, LL + q4)
    n = 0
    for u in range(4):
        for q4 in range(4):
            B = 32 + 16 * (n % 8); n += 1
            acc = 32 * q4 + 8 * u
            for i in range(8): k.I("v_accvgpr_read_b32 v%d, a%d", B + i, acc + i)
            for i in range(8): k.I("v_mul_f32 v%d, v%d, v%d", B + i, B + i, LL + q4)
            for i in range(4): k.I("v_cvt_pk_bf16_f32 v%d, v%d, v%d", B + 8 + i, B + 2 * i, B + 2 * i + 1)
            k.I("buffer_store_dwordx4 %s, v%d, s[%d:%d], s53 offen offset:%d", vr(B + 8), VL16, SACT, SACT + 3, 1024 * q4)
        k.I("s_add_u32 s53, s53, 4096")
    if gen.STAMPS:
        k.I("s_waitcnt vmcnt(0)")
        stamp(k, 6, 250)
        k.I("v_mov_b32 v%d, s98", 250)
        k.I("buffer_store_dword v%d, v%d, s[92:95], 0 offen", 250, 251)
    k.L("KA_END")
    k.I("s_endpgm")
    for lab, o, buf in rare:
        k.L(lab)
        k.I("s_nop 15")
        for qt in range(2):
            q4 = 2 * o + qt
            S = Sreg(buf, o, qt, 0); SN = Sreg(1 - buf, o, qt, 0)
            k.I("v_max3_f32 v%d, v%d, v%d, v%d", RT, S, S + 1, S + 2)
            k.I("v_max3_f32 v%d, v%d, v%d, v%d", RT, RT, S + 3, S + 4)
            k.I("v_max3_f32 v%d, v%d, v%d, v%d", RT, RT, S + 5, S + 6)
            k.I("v_max3_f32 v%d, v%d, v%d, 0", RT, RT, S + 7)
            xreduce(k, "v_max_f32", RT, RT + 1)
            k.I("v_exp_f32 v%d, -v%d", RT + 1, RT)
            for i in range(4): k.I("v_sub_f32 v%d, v%d, v%d", NM + 4 * q4 + i, NM + 4 * q4 + i, RT)
            for i in range(8): k.I("v_sub_f32 v%d, v%d, v%d", S + i, S + i, RT)
            for i in range(8): k.I("v_sub_f32 v%d, v%d, v%d", SN + i, SN + i, RT)
            k.I("v_mul_f32 v%d, v%d, v%d", LL + q4, LL + q4, RT + 1)
            for i in range(0, 32, 4):
                for j in range(4): k.I("v_accvgpr_read_b32 v%d, a%d", RT + 2 + j, 32 * q4 + i + j)
                for j in range(4): k.I("v_mul_f32 v%d, v%d, v%d", RT + 2 + j, RT + 2 + j, RT + 1)
                for j in range(4): k.I("v_accvgpr_write_b32 a%d, v%d", 32 * q4 + i + j, RT + 2 + j)
            for i in range(8): k.I("v_exp_f32 v%d, v%d", RT + 2 + i, S + i)
            k.I("s_nop 0")
            k.I("v_add_f32 v%d, v%d, v%d", TS + q4, RT + 2, RT + 3)
            for i in range(2, 8): k.I("v_add_f32 v%d, v%d, v%d", TS + q4, TS + q4, RT + 2 + i)
            for i in range(4): k.I("v_cvt_pk_bf16_f32 v%d, v%d, v%d", PP + 4 * q4 + i, RT + 2 + 2 * i, RT + 3 + 2 * i)
        k.I("s_nop 3")
        k.I("s_branch %sB", lab)
    return k.text(), descriptor("ka_kernel", 512, 80, 256), 163840

if __name__ == "__main__":
    if "stamps" in sys.argv: gen.STAMPS = True
    ta, da, la = kernel_a(dumpq="dumpq" in sys.argv)
    tb, db, lb = kernel_b()
    out = "full.s"
    for a in sys.argv:
        if a.startswith("out="): out = a[4:]
    assemble([("ka_kernel", ta, da, la, 256), ("kb_kernel", tb, db, lb, 256)], out)
```

```python
from gen_a import *
ta, da, la = kernel_a()
tb, db, lb = kernel_b()
te = ".globl ke_kernel\n.p2align 8\n.type ke_kernel,@function\nke_kernel:\n  s_endpgm\n"
de = descriptor("ke_kernel", 8, 16, 8)
A = ("ka_kernel", ta, da, la, 256); B = ("kb_kernel", tb, db, lb, 256); E = ("ke_kernel", te, de, 0, 256)
assemble([A, B, E, E, E, E], "v_e_end.s")
assemble([E, E, E, E, A, B], "v_e_start.s")
assemble([A, B, B], "v_bb.s")
assemble([A, A, B], "v_aab.s")
```

```python
import sys
NAME = "recurrent_scan__gqa_block_cached__glu_gated_bilinear__prompt"

class K:
    def __init__(s): s.l = []
    def I(s, t, *a):
        if a: t = t % a
        s.l.append("  " + t)
    def L(s, lab): s.l.append(lab + ":")
    def C(s, t): s.l.append("  ; " + t)
    def ext(s, lines):
        for x in lines:
            if x.endswith(":"): s.l.append(x)
            else: s.l.append("  " + x)
    def text(s): return "\n".join(s.l) + "\n"
def vr(b, n=4, t='v'): return "%s[%d:%d]" % (t, b, b + n - 1)
def ar(b, n=4): return vr(b, n, 'a')
MF = "v_mfma_f32_16x16x32_bf16"
NKS = 171
ACT_BYTES = 32 * NKS * 4096

class VMQ:
    def __init__(s, k): s.k = k; s.tags = []
    def emit(s, ops):
        for t, x in ops:
            s.k.I(x)
            if t != "s": s.tags.append(t)
    def count(s, *tags):
        last = max((i for i, t in enumerate(s.tags) if t in tags), default=-1)
        return len(s.tags) - 1 - last
    def wait(s, *tags, lgkm=None):
        n = min(63, s.count(*tags))
        s.k.I("s_waitcnt vmcnt(%d)%s" % (n, "" if lgkm is None else " lgkmcnt(%d)" % lgkm))

def srd(k, d, lo, hi, nrec):
    k.I("s_mov_b32 s%d, s%d", d, lo)
    k.I("s_and_b32 s%d, s%d, 0xffff", d + 1, hi)
    if isinstance(nrec, str): k.I("s_mov_b32 s%d, %s", d + 2, nrec)
    else: k.I("s_mov_b32 s%d, 0x%x", d + 2, nrec)
    k.I("s_mov_b32 s%d, 0x20000", d + 3)

STAMPS = False
ENC = None
def stamp_init(k, kidx, wsl, wsh, wave_sgpr):
    if not STAMPS: return
    if STAMPS == "dbg":
        k.I("s_load_dwordx2 s[92:93], s[0:1], 80")
        k.I("s_waitcnt lgkmcnt(0)")
        k.I("s_add_u32 s92, s92, %d", 512 if kidx == 0 else 40)
        k.I("s_addc_u32 s93, s93, 0")
        k.I("s_and_b32 s93, s93, 0xffff")
        k.I("s_lshl_b32 s90, s2, 2")
        k.I("s_add_u32 s90, s90, s%d", wave_sgpr)
        k.I("s_cmp_eq_u32 s90, 400")
        k.I("s_cselect_b32 s94, %d, 0", 40 if kidx == 0 else 24)
        k.I("s_mov_b32 s95, 0x20000")
        return
    k.I("s_lshl_b32 s90, s2, 8")
    k.I("s_lshl_b32 s91, s%d, 6", wave_sgpr)
    k.I("s_add_u32 s90, s90, s91")
    k.I("s_add_u32 s90, s90, 0x%x", (64 << 20) + kidx * 65536)
    k.I("s_add_u32 s92, s%d, s90", wsl)
    k.I("s_addc_u32 s93, s%d, 0", wsh)
    k.I("s_and_b32 s93, s93, 0xffff")
    k.I("s_mov_b32 s94, 64")
    k.I("s_mov_b32 s95, 0x20000")
def stamp(k, i, vt):
    if ENC:
        if i in ENC:
            k.I("s_memrealtime s[96:97]")
            k.I("s_waitcnt lgkmcnt(0)")
            k.I("s_mov_b32 s%d, s96", 100 + ENC.index(i))
        return
    if not STAMPS: return
    k.I("s_memrealtime s[96:97]")
    k.I("s_waitcnt lgkmcnt(0)")
    k.I("v_mov_b32 v%d, s96", vt)
    k.I("v_mov_b32 v%d, 0", vt + 1)
    k.I("buffer_store_dword v%d, v%d, s[92:95], 0 offen offset:%d", vt, vt + 1, 4 * i)

def descriptor(name, nv, ns, acc):
    if STAMPS or ENC: ns = 102
    return """.section .rodata,"a"
.p2align 6
.amdhsa_kernel %s
  .amdhsa_next_free_vgpr %d
  .amdhsa_next_free_sgpr %d
  .amdhsa_accum_offset %d
  .amdhsa_group_segment_fixed_size 0
  .amdhsa_kernarg_size 96
  .amdhsa_user_sgpr_count 2
  .amdhsa_user_sgpr_kernarg_segment_ptr 1
  .amdhsa_system_sgpr_workgroup_id_x 1
.end_amdhsa_kernel
.text
""" % (name, nv, ns, acc)

def kernel_b(U=6, exp=''):
    k = K()
    k.l += [".globl kb_kernel", ".p2align 8", ".type kb_kernel,@function", "kb_kernel:"]
    k.I("s_cmp_ge_u32 s2, 256")
    k.I("s_cbranch_scc1 KB_END")
    if STAMPS: k.I("s_memrealtime s[98:99]")
    k.I("s_load_dwordx2 s[4:5], s[0:1], 0")
    k.I("s_load_dwordx2 s[6:7], s[0:1], 32")
    k.I("s_load_dwordx2 s[8:9], s[0:1], 64")
    k.I("s_load_dwordx2 s[10:11], s[0:1], 72")
    k.I("s_load_dwordx2 s[12:13], s[0:1], 88")
    k.I("v_lshrrev_b32 v1, 6, v0")
    k.I("v_and_b32 v0, 63, v0")
    k.I("v_readfirstlane_b32 s32, v1")
    k.I("s_and_b32 s33, s2, 7")
    k.I("s_lshr_b32 s34, s2, 3")
    k.I("s_and_b32 s35, s34, 3")
    k.I("s_lshr_b32 s36, s34, 2")
    k.I("s_lshl_b32 s33, s33, 2")
    k.I("s_add_u32 s33, s33, s35")
    k.I("s_lshl_b32 s36, s36, 7")
    k.I("s_mul_i32 s37, s32, 43")
    k.I("s_cmp_eq_u32 s32, 3")
    k.I("s_cselect_b32 s38, 1, 0")
    k.I("s_sub_u32 s37, s37, s38")
    k.I("s_cmp_eq_u32 s32, 2")
    k.I("s_cselect_b32 s39, 42, 43")
    VDW, VA, VR = 2, 6, 8
    B0 = 16; A0 = B0 + 16 * U; AC = A0 + 32; VX = AC + 64; NV = VX + 8 + 4
    T = VX + 8
    k.I("v_lshrrev_b32 v%d, 3, v0", T)
    k.I("v_lshlrev_b32 v%d, 10, v%d", VDW, T)
    k.I("v_lshrrev_b32 v%d, 1, v0", T)
    k.I("v_lshrrev_b32 v%d, 4, v0", T + 1)
    k.I("v_xor_b32 v%d, v%d, v%d", T, T, T + 1)
    k.I("v_and_b32 v%d, 3, v%d", T, T)
    k.I("v_lshl_add_u32 v%d, v%d, 5, v%d", VDW, T, VDW)
    k.I("v_and_b32 v%d, 1, v0", T)
    k.I("v_lshl_add_u32 v%d, v%d, 4, v%d", VDW, T, VDW)
    k.I("v_add_u32 v%d, s36, v%d", VDW, VDW)
    for i in range(1, 4): k.I("v_add_u32 v%d, %d, v%d", VDW + i, 7168 * i, VDW)
    k.I("v_lshlrev_b32 v%d, 4, v0", VA)
    RS = max(U * 4096, 20480)
    k.I("s_mul_i32 s40, s32, %d", RS)
    k.I("v_lshrrev_b32 v%d, 2, v0", T)
    k.I("v_lshlrev_b32 v%d, 7, v%d", T, T)
    k.I("v_and_b32 v%d, 3, v0", T + 1)
    k.I("v_lshl_add_u32 v%d, v%d, 3, v%d", T, T + 1, T)
    k.I("v_add_u32 v%d, s40, v%d", T, T)
    k.I("v_bfe_u32 v%d, v0, 3, 2", T + 1)
    for nt in range(4):
        k.I("v_xor_b32 v%d, %d, v%d", T + 2, nt, T + 1)
        k.I("v_lshl_add_u32 v%d, v%d, 5, v%d", VR + nt, T + 2, T)
    k.I("s_waitcnt lgkmcnt(0)")
    k.I("s_lshl_b32 s41, s37, 15")
    k.I("s_add_u32 s42, s6, s41")
    k.I("s_addc_u32 s43, s7, 0")
    k.I("s_cmp_eq_u32 s32, 3")
    k.I("s_cselect_b32 s42, s8, s42")
    k.I("s_cselect_b32 s43, s9, s43")
    k.I("s_lshl_b32 s44, s39, 15")
    srd(k, 16, 42, 43, "s44")
    k.I("s_mul_i32 s41, s33, %d", NKS)
    k.I("s_add_u32 s41, s41, s37")
    k.I("s_lshl_b32 s41, s41, 12")
    k.I("s_add_u32 s42, s12, s41")
    k.I("s_addc_u32 s43, s13, 0")
    k.I("s_lshl_b32 s44, s39, 12")
    srd(k, 20, 42, 43, "s44")
    srd(k, 24, 4, 5, 2048 * 1024)
    srd(k, 28, 10, 11, 2048 * 1024)
    VO = 12
    k.I("s_lshl_b32 s41, s33, 6")
    k.I("s_lshl_b32 s42, s32, 4")
    k.I("s_add_u32 s41, s41, s42")
    k.I("s_lshl_b32 s41, s41, 10")
    k.I("s_add_u32 s41, s41, s36")
    k.I("v_lshrrev_b32 v%d, 3, v0", T)
    k.I("v_lshlrev_b32 v%d, 10, v%d", VO, T)
    k.I("v_and_b32 v%d, 7, v0", T)
    k.I("v_lshl_add_u32 v%d, v%d, 4, v%d", VO, T, VO)
    k.I("v_add_u32 v%d, s41, v%d", VO, VO)
    k.I("v_add_u32 v%d, 8192, v%d", VO + 1, VO)
    SW, SA = 45, 46
    k.I("s_mov_b32 s%d, 0", SW)
    k.I("s_mov_b32 s%d, 0", SA)
    q = VMQ(k)
    NS = 43
    def issueW(s):
        o = [("s", "s_add_u32 m0, s40, %d" % ((s % U) * 4096)), ("s", "s_mov_b32 s%d, %d" % (SW, s * 32768))]
        for i in range(4): o.append(("W%d" % s, "buffer_load_dwordx4 v%d, s[16:19], s%d offen offset:%d lds" % (VDW + i, SW, 1024 * i)))
        return o
    def issueB(s):
        o = [("s", "s_mov_b32 s%d, %d" % (SA, s * 4096))]
        for qt in range(4): o.append(("B%d" % s, "buffer_load_dwordx4 %s, v%d, s[20:23], s%d offen offset:%d" % (vr(B0 + 16 * (s % U) + 4 * qt), VA, SA, 1024 * qt)))
        return o
    VTA, VTW, VJ = 14, 15, T + 3
    k.I("v_lshlrev_b32 v%d, 10, v0", VTA)
    k.I("v_add_u32 v%d, s36, v%d", VTA, VTA)
    k.I("s_lshl_b32 s41, s35, 10")
    k.I("s_add_u32 s41, s41, s36")
    k.I("v_lshlrev_b32 v%d, 12, v0", VTW)
    k.I("v_add_u32 v%d, s41, v%d", VTW, VTW)
    def touchA(j): return [("s", "s_mov_b32 s47, %d" % (j * 65536)), ("T", "buffer_load_dword v%d, v%d, s[20:23], s47 offen" % (VJ, VTA))]
    def touchW(j): return [("s", "s_mov_b32 s48, %d" % (j * 262144)), ("T", "buffer_load_dword v%d, v%d, s[16:19], s48 offen" % (VJ, VTW))]
    TS = {}
    if 'n' not in exp:
        q.emit(touchA(0)); q.emit(touchW(0))
        TS = {0: touchW(1), 4: touchW(2), 6: touchA(1), 12: touchW(3), 20: touchW(4), 22: touchA(2), 28: touchW(5)}
    for s in range(U):
        q.emit(issueW(s)); q.emit(issueB(s))
    q.emit([("X", "buffer_load_dwordx4 %s, v%d, s[24:27], 0 offen" % (vr(VX), VO)), ("X", "buffer_load_dwordx4 %s, v%d, s[24:27], 0 offen" % (vr(VX + 4), VO + 1))])
    def trreads(slot, aset):
        o = []
        for nt in range(4):
            for e in range(2):
                o.append("ds_read_b64_tr_b16 %s, v%d offset:%d" % (vr(A0 + 16 * aset + 4 * nt + 2 * e, 2), VR + nt, slot * 4096 + e * 2048))
        return o
    q.wait("W0")
    k.ext(trreads(0, 0))
    for s in range(NS):
        aset = s % 2
        if s + 1 < NS: q.wait("W%d" % (s + 1), "B%d" % s, lgkm=0)
        else: q.wait("B%d" % s, lgkm=0)
        fill = [[] for _ in range(16)]
        if s + 1 < NS:
            tr = trreads((s + 1) % U, 1 - aset)
            for i in range(8): fill[i].append(("s", tr[i]))
        if s + U < NS:
            lw = issueW(s + U)
            fill[6].append(lw[0]); fill[7].append(lw[1])
            for i in range(4): fill[8 + 2 * i].append(lw[2 + i])
        if s in TS:
            fill[9].append(TS[s][0]); fill[11].append(TS[s][1])
        i = 0
        for qt in range(4):
            for nt in range(4):
                d = AC + 16 * nt + 4 * qt
                k.I("%s %s, %s, %s, %s", MF, vr(d), vr(A0 + 16 * aset + 4 * nt), vr(B0 + 16 * (s % U) + 4 * qt), "0" if s == 0 else vr(d))
                q.emit(fill[i]); i += 1
        if s + U < NS: q.emit(issueB(s + U))
    k.L("KB_EPI")
    k.I("s_waitcnt vmcnt(0) lgkmcnt(0)")
    stamp_init(k, 1, 12, 13, 32)
    stamp(k, 1, T)
    k.I("s_nop 7")
    k.I("v_and_b32 v%d, 15, v0", T)
    k.I("v_mul_u32_u24 v%d, 272, v%d", T, T)
    k.I("v_lshrrev_b32 v%d, 4, v0", T + 1)
    k.I("v_lshl_add_u32 v%d, v%d, 4, v%d", T, T + 1, T)
    k.I("v_add_u32 v%d, s40, v%d", T, T)
    for qt in range(4):
        for nt in range(4):
            k.I("ds_write_b128 v%d, %s offset:%d", T, vr(AC + 16 * nt + 4 * qt), qt * 16 * 272 + nt * 64)
    k.I("v_lshrrev_b32 v%d, 3, v0", T)
    k.I("s_lshl_b32 s41, s32, 4")
    k.I("v_add_u32 v%d, s41, v%d", T, T)
    k.I("v_mul_u32_u24 v%d, 272, v%d", T, T)
    k.I("v_and_b32 v%d, 7, v0", T + 1)
    k.I("v_lshl_add_u32 v%d, v%d, 5, v%d", T, T + 1, T)
    k.I("v_add_u32 v%d, %d, v%d", T + 1, 2 * RS, T)
    k.I("s_waitcnt lgkmcnt(0)")
    k.I("s_barrier")
    R0 = B0
    for p in range(2):
        for j in range(4):
            for hh in range(2):
                k.I("ds_read_b128 %s, v%d offset:%d", vr(R0 + 16 * j + 8 * p + 4 * hh), T + (j // 2), (j % 2) * RS + p * 8 * 272 + hh * 16)
    k.I("s_mov_b32 s41, 0xffff0000")
    k.I("s_mov_b32 s42, 0xbfb8aa3b")
    W = A0
    def rnd(a, b, t):
        k.I("v_cvt_pk_bf16_f32 v%d, v%d, v%d", t, a, b)
        k.I("v_lshlrev_b32 v%d, 16, v%d", a, t)
        k.I("v_and_b32 v%d, s41, v%d", b, t)
    for p in range(2):
        k.I("s_waitcnt lgkmcnt(%d)", 8 if p == 0 else 0)
        S = R0 + 8 * p; F = R0 + 48 + 8 * p
        for i in range(8):
            k.I("v_add_f32 v%d, v%d, v%d", S + i, S + i, S + 16 + i)
        for i in range(8):
            k.I("v_add_f32 v%d, v%d, v%d", S + i, S + i, S + 32 + i)
        for i in range(0, 8, 2):
            rnd(S + i, S + i + 1, W); rnd(F + i, F + i + 1, W + 1)
        for i in range(8): k.I("v_mul_f32 v%d, s42, v%d", W + 2 + i, F + i)
        for i in range(8): k.I("v_exp_f32 v%d, v%d", W + 2 + i, W + 2 + i)
        for i in range(8): k.I("v_add_f32 v%d, 1.0, v%d", W + 2 + i, W + 2 + i)
        for i in range(8): k.I("v_rcp_f32 v%d, v%d", W + 2 + i, W + 2 + i)
        for i in range(8): k.I("v_mul_f32 v%d, v%d, v%d", F + i, F + i, W + 2 + i)
        for i in range(0, 8, 2): rnd(F + i, F + i + 1, W)
        for i in range(8): k.I("v_mul_f32 v%d, v%d, v%d", S + i, S + i, F + i)
        for i in range(0, 8, 2): rnd(S + i, S + i + 1, W)
        for i in range(4):
            k.I("v_lshlrev_b32 v%d, 16, v%d", W, VX + 4 * p + i)
            k.I("v_and_b32 v%d, s41, v%d", W + 1, VX + 4 * p + i)
            k.I("v_add_f32 v%d, v%d, v%d", W, W, S + 2 * i)
            k.I("v_add_f32 v%d, v%d, v%d", W + 1, W + 1, S + 2 * i + 1)
            k.I("v_cvt_pk_bf16_f32 v%d, v%d, v%d", W + 12 + 4 * p + i, W, W + 1)
        k.I("buffer_store_dwordx4 %s, v%d, s[28:31], 0 offen", vr(W + 12 + 4 * p), VO + p)
    if STAMPS:
        k.I("s_waitcnt vmcnt(0)")
        stamp(k, 2, T)
        k.I("v_mov_b32 v%d, s98", T)
        k.I("buffer_store_dword v%d, v%d, s[92:95], 0 offen", T, T + 1)
    k.L("KB_END")
    k.I("s_endpgm")
    assert NV <= 256, NV
    return k.text(), descriptor("kb_kernel", 256, 64, 256), 4 * RS

HEADER = open("cdna_kernels/%s.s.ref" % NAME).read().split("; Override launch")[0]

def assemble(parts, path):
    s = HEADER
    for name, text, desc, lds, grid in parts:
        s += "; @launch kernel=%s grid=(%d,1,1) block=(256,1,1) lds=%d\n" % (name, grid, lds)
    s += '.amdgcn_target "amdgcn-amd-amdhsa--gfx950"\n.text\n'
    seen = set()
    for name, text, desc, lds, grid in parts:
        if name in seen: continue
        seen.add(name)
        s += text
    seen = set()
    for name, text, desc, lds, grid in parts:
        if name in seen: continue
        seen.add(name)
        s += desc
    open(path, "w").write(s)
    import hazard
    e = hazard.check(s)
    for x in e: print("HAZARD line %d -> %d: %s need %d have %d\n    %s\n    %s" % x)
    print("wrote", path, len(s), "bytes; hazards:", len(e))

if __name__ == "__main__":
    if "stamps" in sys.argv: STAMPS = True
    for U, exp in ((6, ""), (6, "n"), (4, ""), (7, "")):
        t, d, l = kernel_b(U=U, exp=exp)
        assemble([("kb_kernel", t, d, l, 256)], "kb_U%d%s.s" % (U, exp))
```

```python
from gen import *
import gen
PART_OFF = 32 << 20
FLAG_OFF = 48 << 20
SLEEP = 8
INV = False
PF_OFF = (48 << 20) + 65536
def kernel_b2(R=4, k=None):
    fused = k is not None
    SB = 10 if fused else 0
    if not fused:
        k = K()
        k.l += [".globl kb_kernel", ".p2align 8", ".type kb_kernel,@function", "kb_kernel:"]
        k.I("s_cmp_ge_u32 s2, 256")
        k.I("s_cbranch_scc1 KB_END")
        if gen.STAMPS: k.I("s_memrealtime s[98:99]")
    k.I("s_load_dwordx2 s[4:5], s[0:1], 0")
    k.I("s_load_dwordx2 s[6:7], s[0:1], 32")
    k.I("s_load_dwordx8 s[8:15], s[0:1], 64")
    if fused:
        k.I("v_mov_b32 v0, v240")
        k.I("s_mov_b32 s32, s48")
        k.I("s_lshl_b32 s64, s50, 2")
        k.I("s_add_u32 s64, s64, s48")
        k.I("s_lshl_b32 s64, s64, 5")
        k.I("s_add_u32 s64, s64, s49")
        k.I("s_lshl_b32 s64, s64, 2")
        k.I("s_add_u32 s64, s64, 65536")
    else:
        k.I("v_lshrrev_b32 v1, 6, v0")
        k.I("v_and_b32 v0, 63, v0")
        k.I("v_readfirstlane_b32 s32, v1")
    k.I("s_bfe_u32 s33, s2, 0x20001")
    k.I("s_and_b32 s34, s2, 1")
    k.I("s_lshl_b32 s34, s34, 3")
    k.I("s_bfe_u32 s35, s2, 0x30003")
    k.I("s_add_u32 s34, s34, s35")
    k.I("s_lshr_b32 s35, s2, 6")
    k.I("s_mul_i32 s37, s33, 43")
    k.I("s_cmp_eq_u32 s33, 3")
    k.I("s_cselect_b32 s38, 1, 0")
    k.I("s_sub_u32 s37, s37, s38")
    k.I("s_cmp_eq_u32 s33, 2")
    k.I("s_cselect_b32 s39, 42, 43")
    k.I("s_and_b32 s49, s32, 1")
    k.I("s_lshr_b32 s50, s32, 1")
    VDW, VDA, VL16, VRA, VRB, VO = 2, 4, 5, 6, 10, 11
    T = 12
    A0 = 16; B0 = 48; AC = 80; RR = 144; VX = 208; W = 216
    g_, t1, t2 = T, T + 1, T + 2
    k.I("v_lshrrev_b32 v%d, 4, v0", g_)
    k.I("v_lshlrev_b32 v%d, 4, v0", VL16)
    k.I("s_lshl_b32 s40, s32, 13")
    k.I("s_lshl_b32 s41, s35, 8")
    k.I("s_add_u32 s40, s40, s41")
    k.I("v_lshlrev_b32 v%d, 10, v%d", t1, g_)
    k.I("v_add_u32 v%d, s40, v%d", t1, t1)
    k.I("v_and_b32 v%d, 1, v0", t2)
    k.I("v_lshl_add_u32 v%d, v%d, 4, v%d", t1, t2, t1)
    k.I("v_bfe_u32 v%d, v0, 1, 3", t2)
    k.I("v_xor_b32 v%d, v%d, v%d", t2, t2, g_)
    k.I("v_lshl_add_u32 v%d, v%d, 5, v%d", VDW, t2, t1)
    k.I("v_xor_b32 v%d, 4, v%d", t2, t2)
    k.I("v_lshl_add_u32 v%d, v%d, 5, v%d", VDW + 1, t2, t1)
    k.I("v_add_u32 v%d, %d, v%d", VDW + 1, 4096 - 1024, VDW + 1)
    k.I("s_lshl_b32 s40, s34, 1")
    k.I("s_add_u32 s40, s40, s50")
    k.I("s_mul_i32 s40, s40, %d", NKS)
    k.I("s_add_u32 s40, s40, s37")
    k.I("s_lshl_b32 s40, s40, 12")
    k.I("s_lshl_b32 s41, s49, 11")
    k.I("s_add_u32 s40, s40, s41")
    k.I("v_add_u32 v%d, s40, v%d", VDA, VL16)
    k.I("s_waitcnt lgkmcnt(0)")
    k.I("s_lshl_b32 s41, s37, 15")
    k.I("s_add_u32 s42, s6, s41")
    k.I("s_addc_u32 s43, s7, 0")
    k.I("s_cmp_eq_u32 s33, 3")
    k.I("s_cselect_b32 s42, s8, s42")
    k.I("s_cselect_b32 s43, s9, s43")
    k.I("s_lshl_b32 s44, s39, 15")
    srd(k, 16, 42, 43, "s44")
    srd(k, 20, 14, 15, ACT_BYTES)
    k.I("s_lshl_b32 s51, s32, 11")
    q = VMQ(k)
    NS = 43
    NST = 22
    SW, SA = 45, 46
    def issue(s):
        b = ((s // 2) % R) * 32768 + (s % 2) * 16384
        o = [("s", "s_add_u32 m0, s51, %d" % b), ("s", "s_mov_b32 s%d, %d" % (SW, s * 32768))]
        for j in range(2): o.append(("L%d" % (s // 2), "buffer_load_dwordx4 v%d, s[16:19], s%d offen offset:%d lds" % (VDW + j, SW, 1024 * j)))
        o += [("s", "s_add_u32 m0, s51, %d" % (b + 8192)), ("s", "s_mov_b32 s%d, %d" % (SA, s * 4096))]
        for j in range(2): o.append(("L%d" % (s // 2), "buffer_load_dwordx4 v%d, s[20:23], s%d offen offset:%d lds" % (VDA, SA, 1024 * j)))
        return o
    if fused:
        for s in range(2 * R): q.emit(issue(s)[:4])
    else:
        for s in range(2 * R): q.emit(issue(s))
    srd(k, 24, 4, 5, 2048 * 1024)
    srd(k, 28, 10, 11, 2048 * 1024)
    k.I("s_add_u32 s42, s14, 0x%x", PART_OFF)
    k.I("s_addc_u32 s43, s15, 0")
    srd(k, 52, 42, 43, 8 << 20)
    k.I("s_add_u32 s42, s14, 0x%x", FLAG_OFF)
    k.I("s_addc_u32 s43, s15, 0")
    srd(k, 56, 42, 43, 65536 + 4096)
    if fused:
        k.I("v_mov_b32 v%d, s88", t2)
        k.I("v_mov_b32 v%d, 0", t1)
        k.I("s_waitcnt vmcnt(%d)", 4 * R)
        k.I("s_mov_b64 exec, 1")
        k.I("buffer_store_dword v%d, v%d, s[56:59], s64 offen sc1", t2, t1)
        k.I("s_mov_b64 exec, -1")
    k.I("v_lshrrev_b32 v%d, 2, v0", t1)
    k.I("v_lshlrev_b32 v%d, 8, v%d", t1, t1)
    k.I("v_and_b32 v%d, 3, v0", t2)
    k.I("v_lshl_add_u32 v%d, v%d, 3, v%d", t1, t2, t1)
    k.I("v_bfe_u32 v%d, v0, 2, 3", t2)
    k.I("s_lshl_b32 s40, s50, 2")
    k.I("v_xor_b32 v%d, s40, v%d", t2, t2)
    RA = 224
    RB = 228
    for nt in range(4):
        k.I("v_xor_b32 v%d, %d, v%d", T + 3, nt, t2)
        k.I("v_lshl_add_u32 v%d, v%d, 5, v%d", RA + nt, T + 3, t1)
    for sl in range(4):
        k.I("s_add_u32 s40, s33, %d", sl)
        k.I("s_and_b32 s40, s40, 3")
        k.I("s_lshl_b32 s41, s49, 2")
        k.I("s_add_u32 s40, s40, s41")
        k.I("s_lshl_b32 s40, s40, 10")
        k.I("s_add_u32 s40, s40, 8192")
        k.I("v_add_u32 v%d, s40, v%d", RB + sl, VL16)
    k.I("s_lshl_b32 s40, s34, 7")
    k.I("s_lshl_b32 s41, s49, 6")
    k.I("s_add_u32 s40, s40, s41")
    k.I("s_lshl_b32 s41, s33, 4")
    k.I("s_add_u32 s40, s40, s41")
    k.I("s_lshl_b32 s40, s40, 10")
    k.I("s_lshl_b32 s41, s35, 8")
    k.I("s_add_u32 s40, s40, s41")
    k.I("s_lshl_b32 s41, s50, 7")
    k.I("s_add_u32 s40, s40, s41")
    k.I("v_and_b32 v%d, 15, v0", t1)
    k.I("v_lshlrev_b32 v%d, 10, v%d", t1, t1)
    k.I("v_lshl_add_u32 v%d, v%d, 3, v%d", t1, g_, t1)
    k.I("v_add_u32 v%d, s40, v%d", VO, t1)
    k.I("s_mov_b32 s41, %d", (-(R - 1) * 32768) & 0xffffffff)
    q.emit([("X", "buffer_load_dwordx2 %s, v%d, s[24:27], 0 offen offset:%d" % (vr(VX + 2 * nt, 2), VO, 32 * nt)) for nt in range(4)])
    def reads(st):
        o = []
        for nt in range(4):
            for e in range(2): o.append("ds_read_b64_tr_b16 %s, v%d offset:%d" % (vr(A0 + 16 * st + 4 * nt + 2 * e, 2), RA + nt, st * 16384 + e * 4096))
        for sl in range(4): o.append("ds_read_b128 %s, v%d offset:%d" % (vr(B0 + 16 * st + 4 * sl), RB + sl, st * 16384))
        return o
    def mfmas(st, fill, first=False):
        i = 0
        for sl in range(4):
            for nt in range(4):
                d = AC + 16 * sl + 4 * nt
                k.I("%s %s, %s, %s, %s", MF, vr(d), vr(A0 + 16 * st + 4 * nt), vr(B0 + 16 * st + 4 * sl), "0" if first else vr(d))
                k.ext(fill[i]); i += 1
    def rfill(st):
        fill = [[] for _ in range(16)]
        rd = reads(st)
        for i in range(12): fill[i // 2 if i < 8 else i - 4].append(rd[i])
        return fill
    SM, SD, SC = 47, 48, 36
    k.I("s_mov_b32 s%d, s51", SM)
    k.I("s_mov_b32 s%d, %d", SW, 2 * R * 32768)
    k.I("s_mov_b32 s%d, %d", SA, 2 * R * 4096)
    k.I("s_mov_b32 s%d, 0", SC)
    if fused:
        stamp(k, SB + 0, 250)
        masks = [((1 << (hi + 1)) - 1) & ~((1 << lo) - 1) for lo, hi in ((0, 10), (10, 21), (21, 31), (0, 28))]
        k.I("s_mov_b32 s65, 0x%x", masks[0])
        for kp in range(1, 4):
            k.I("s_cmp_eq_u32 s33, %d", kp)
            k.I("s_cselect_b32 s65, 0x%x, s65", masks[kp])
        k.I("s_lshl_b32 s66, s34, 1")
        k.I("s_add_u32 s66, s66, s50")
        k.I("s_lshl_b32 s66, s66, 7")
        k.I("s_add_u32 s66, s66, 65536")
        k.I("v_and_b32 v%d, 31, v0", t1)
        k.I("v_lshlrev_b32 v%d, 2, v%d", t1, t1)
        k.I("s_mov_b32 s67, 0")
        k.L("KF_POLL")
        k.I("buffer_load_dword v%d, v%d, s[56:59], s66 offen sc1", t2, t1)
        k.I("s_add_u32 s67, s67, 1")
        k.I("s_waitcnt vmcnt(0)")
        k.I("v_cmp_eq_u32 vcc, s88, v%d", t2)
        k.I("s_cmp_ge_u32 s67, 0x100000")
        k.I("s_cbranch_scc1 KF_GO")
        k.I("s_and_b32 s68, vcc_lo, s65")
        k.I("s_cmp_eq_u32 s68, s65")
        k.I("s_cbranch_scc1 KF_GO")
        k.I("s_sleep %d", SLEEP)
        k.I("s_branch KF_POLL")
        k.L("KF_GO")
        if INV: k.I("buffer_inv sc1")
        stamp(k, SB + 4, 250)
        for s in range(2 * R):
            o = issue(s)[4:]
            o[1] = ("s", "s_mov_b32 s69, %d" % (s * 4096))
            q.emit([(t, x.replace("s%d offen" % SA, "s69 offen")) for t, x in o])
        k.I("s_waitcnt vmcnt(4)")
    else: q.wait("L0")
    k.I("s_barrier")
    k.ext(reads(0))
    k.I("s_waitcnt lgkmcnt(0)")
    f = rfill(1)
    for i in range(8): f[8 + i].append("v_add_u32 v%d, 32768, v%d" % (RA + i, RA + i))
    mfmas(0, f, first=True)
    k.I("s_waitcnt vmcnt(%d)", 8 * (R - 2) + 4)
    k.L("KB_LOOP")
    k.I("s_waitcnt vmcnt(%d) lgkmcnt(0)", 8 * (R - 2))
    k.I("s_barrier")
    def dma(h):
        return ["s_add_u32 m0, s%d, %d" % (SM, h * 16384),
                "buffer_load_dwordx4 v%d, s[16:19], s%d offen lds" % (VDW, SW), "buffer_load_dwordx4 v%d, s[16:19], s%d offen offset:1024 lds" % (VDW + 1, SW),
                "s_add_u32 m0, s%d, %d" % (SM, h * 16384 + 8192),
                "buffer_load_dwordx4 v%d, s[20:23], s%d offen lds" % (VDA, SA), "buffer_load_dwordx4 v%d, s[20:23], s%d offen offset:1024 lds" % (VDA, SA),
                "s_add_u32 s%d, s%d, 32768" % (SW, SW), "s_add_u32 s%d, s%d, 4096" % (SA, SA),
                "s_cmp_ge_u32 s%d, s18" % SW, "s_cselect_b32 s%d, 0x7f000000, s%d" % (SA, SA)]
    def put(f, d):
        f[7].append(d[0]); f[8].append(d[1]); f[10].append(d[2]); f[11].append(d[3]); f[12].append(d[4]); f[14].append(d[5]); f[15] += d[6:]
    f = rfill(0); put(f, dma(0))
    f[0] += ["s_add_u32 s%d, s%d, 1" % (SC, SC)]
    f[1] += ["s_add_u32 s40, s%d, 1" % SC]
    f[2] += ["s_and_b32 s40, s40, %d" % (R - 1)]
    f[3] += ["s_cselect_b32 s%d, 32768, s41" % SD]
    mfmas(1, f)
    k.I("s_waitcnt lgkmcnt(0)")
    f = rfill(1); put(f, dma(1))
    for i in range(8): f[8 + i].append("v_add_u32 v%d, s%d, v%d" % (RA + i, SD, RA + i))
    f[15] += ["s_add_u32 s%d, s%d, 32768" % (SM, SM), "s_bitset0_b32 s%d, %d" % (SM, 15 + R.bit_length() - 1), "s_cmp_lt_u32 s%d, 21" % SC]
    mfmas(0, f)
    k.I("s_cbranch_scc1 KB_LOOP")
    k.I("s_waitcnt lgkmcnt(0)")
    if not fused: stamp_init(k, 1, 14, 15, 32)
    stamp(k, SB + 1, 250)
    k.I("s_lshl_b32 s40, s34, 2")
    k.I("s_add_u32 s40, s40, s35")
    k.I("s_lshl_b32 s41, s40, 17")
    k.I("s_lshl_b32 s42, s32, 13")
    k.I("s_add_u32 s41, s41, s42")
    k.I("s_lshl_b32 s42, s33, 15")
    k.I("s_add_u32 s42, s42, s41")
    k.I("s_lshl_b32 s43, s33, 11")
    k.I("s_add_u32 s43, s43, s41")
    for sl in range(1, 4):
        for i in range(8): k.I("v_cvt_pk_bf16_f32 v%d, v%d, v%d", RR + 8 * sl + i, AC + 16 * sl + 2 * i, AC + 16 * sl + 2 * i + 1)
        k.I("s_add_u32 s44, s33, %d", sl)
        k.I("s_and_b32 s44, s44, 3")
        k.I("s_lshl_b32 s44, s44, 11")
        k.I("s_add_u32 s44, s44, s42")
        for j in range(2): k.I("buffer_store_dwordx4 %s, v%d, s[52:55], s44 offen offset:%d sc1", vr(RR + 8 * sl + 4 * j), VL16, 1024 * j)
    k.I("s_lshl_b32 s40, s40, 2")
    k.I("s_add_u32 s40, s40, s32")
    k.I("s_lshl_b32 s40, s40, 7")
    k.I("s_lshl_b32 s44, s33, 2")
    k.I("v_mov_b32 v%d, s40", t1)
    k.I("v_mov_b32 v%d, %s", t2, "s88" if fused else "1")
    tab = 0
    for kp, o in enumerate(((1, 2, 3), (2, 0, 3), (0, 1, 3), (0, 1, 2))): tab |= (o[0] | o[1] << 2 | o[2] << 4) << (8 * kp)
    k.I("s_lshl_b32 s45, s33, 3")
    k.I("s_lshr_b32 s45, 0x%x, s45", tab)
    for j in range(3):
        k.I("s_bfe_u32 s%d, s45, 0x%x", 60 + j, (2 << 16) | (2 * j))
        k.I("s_lshl_b32 s%d, s%d, 15", 60 + j, 60 + j)
        k.I("s_add_u32 s%d, s%d, s43", 60 + j, 60 + j)
    k.I("s_waitcnt vmcnt(0)")
    k.I("s_mov_b64 exec, 1")
    k.I("buffer_store_dword v%d, v%d, s[56:59], s44 offen sc1", t2, t1)
    k.I("s_mov_b32 s44, 0")
    PF = W
    k.L("KB_POLL")
    k.I("buffer_load_dwordx4 %s, v%d, s[56:59], 0 offen sc1", vr(PF), t1)
    k.I("s_add_u32 s44, s44, 1")
    k.I("s_waitcnt vmcnt(0)")
    for i in range(4): k.I("v_xor_b32 v%d, v%d, v%d", PF + i, t2, PF + i)
    k.I("v_or3_b32 v%d, v%d, v%d, v%d", PF, PF, PF + 1, PF + 2)
    k.I("v_or_b32 v%d, v%d, v%d", PF, PF, PF + 3)
    k.I("s_cmp_ge_u32 s44, 0x100000")
    k.I("v_readfirstlane_b32 s45, v%d", PF)
    k.I("s_cbranch_scc1 KB_GO")
    k.I("s_cmp_lg_u32 s45, 0")
    k.I("s_cbranch_scc1 KB_POLL")
    k.L("KB_GO")
    k.I("s_mov_b64 exec, -1")
    stamp(k, SB + 2, 250)
    for j in range(3):
        for hh in range(2):
            k.I("buffer_load_dwordx4 %s, v%d, s[52:55], s%d offen offset:%d sc1", vr(RR + 8 * j + 4 * hh), VL16, 60 + j, 1024 * hh)
    k.I("s_mov_b32 s41, 0xffff0000")
    k.I("s_mov_b32 s42, 0xbfb8aa3b")
    def rnd(a, b, t):
        k.I("v_cvt_pk_bf16_f32 v%d, v%d, v%d", t, a, b)
        k.I("v_lshlrev_b32 v%d, 16, v%d", a, t)
        k.I("v_and_b32 v%d, s41, v%d", b, t)
    S = AC; F = AC + 16; Y = AC + 32
    k.I("s_waitcnt vmcnt(0)")
    for i in range(8):
        k.I("v_lshlrev_b32 v%d, 16, v%d", F + 2 * i, RR + 16 + i)
        k.I("v_and_b32 v%d, s41, v%d", F + 2 * i + 1, RR + 16 + i)
    k.I("s_cmp_lg_u32 s33, 3")
    k.I("s_cbranch_scc1 KB_NOSWAP")
    for i in range(16): k.I("v_swap_b32 v%d, v%d", S + i, F + i)
    k.L("KB_NOSWAP")
    for j in range(2):
        for i in range(8):
            k.I("v_lshlrev_b32 v%d, 16, v%d", W, RR + 8 * j + i)
            k.I("v_and_b32 v%d, s41, v%d", W + 1, RR + 8 * j + i)
            k.I("v_add_f32 v%d, v%d, v%d", S + 2 * i, S + 2 * i, W)
            k.I("v_add_f32 v%d, v%d, v%d", S + 2 * i + 1, S + 2 * i + 1, W + 1)
    for i in range(0, 16, 2): rnd(F + i, F + i + 1, W)
    for i in range(16): k.I("v_mul_f32 v%d, s42, v%d", Y + i, F + i)
    for i in range(16): k.I("v_exp_f32 v%d, v%d", Y + i, Y + i)
    for i in range(16): k.I("v_add_f32 v%d, 1.0, v%d", Y + i, Y + i)
    for i in range(16): k.I("v_rcp_f32 v%d, v%d", Y + i, Y + i)
    for i in range(16): k.I("v_mul_f32 v%d, v%d, v%d", F + i, F + i, Y + i)
    for i in range(8):
        k.I("v_lshlrev_b32 v%d, 16, v%d", W, VX + i)
        k.I("v_and_b32 v%d, s41, v%d", W + 1, VX + i)
        k.I("v_fmac_f32 v%d, v%d, v%d", W, S + 2 * i, F + 2 * i)
        k.I("v_fmac_f32 v%d, v%d, v%d", W + 1, S + 2 * i + 1, F + 2 * i + 1)
        k.I("v_cvt_pk_bf16_f32 v%d, v%d, v%d", Y + i, W, W + 1)
    for nt in range(4):
        k.I("buffer_store_dwordx2 %s, v%d, s[28:31], 0 offen offset:%d", vr(Y + 2 * nt, 2), VO, 32 * nt)
    if gen.STAMPS:
        k.I("s_waitcnt vmcnt(0)")
        stamp(k, SB + 3, 250)
        k.I("v_mov_b32 v250, s98")
        k.I("buffer_store_dword v250, v251, s[92:95], 0 offen")
    if fused: return
    k.L("KB_END")
    k.I("s_endpgm")
    return k.text(), descriptor("kb_kernel", 256, 64, 256), R * 32768

if __name__ == "__main__":
    if "stamps" in sys.argv: gen.STAMPS = True
    for R in (4,):
        t, d, l = kernel_b2(R)
        assemble([("kb_kernel", t, d, l, 256)], "kb2_R%d.s" % R)
```

```python
from gen import *
import gen, struct, math
from gen_b2 import kernel_b2, FLAG_OFF

SLOT = 33792
KOFF = (0, 8448)
VOFF_EVEN = 16896
VOFF_ODD = 25344
CS_LDS = 135168
PG_LDS = 136192
VT_LDS = 137216
QSCALE = struct.unpack("<I", struct.pack("<f", math.log2(math.e) / math.sqrt(128.0)))[0]
THR = 0x49800000
TOUCH_AT = 6
PART_OFF = 32 << 20
PF_REL = 8 << 20
SLEEP = 8
SLEEP2 = 3
XSLEEP = 4
SIDE1 = 8
PEEL = True
STAG = 1
ROT = False
SIDE2 = 16
SIDE3 = 29
T0RDY = 2
NS1 = 4
WBL2 = False
THR_END = 0x4e800000

def weave(k, mf, pre, valu):
    for g in range(len(mf)):
        k.I(mf[g]); k.ext(pre[g]); k.ext(valu[g])

def xreduce(k, op, r, t):
    for sw in ("v_permlane32_swap_b32", "v_permlane16_swap_b32"):
        k.I("v_mov_b32 v%d, v%d", t, r)
        k.I("s_nop 1")
        k.I("%s v%d, v%d", sw, r, t)
        k.I("s_nop 1")
        k.I("%s v%d, v%d, v%d", op, r, r, t)

class Mix:
    def __init__(s, k, side, every): s.k = k; s.side = list(side); s.every = every; s.n = 0
    def tick(s):
        s.n += 1
        if s.n % s.every == 0: s.pop()
    def pop(s):
        while s.side:
            t, x = s.side.pop(0)
            s.k.l.append("  " + x)
            if t == 'd': break
            if 'm0' in x and s.side and s.side[0][0] == 'd': s.k.l.append("  s_nop 0")
    def I(s, t, *a):
        s.k.I(t, *a); s.tick()
    def flush(s):
        while s.side: s.pop()

def kernel_a(shift=4, soft=True, force_fallback=False, fused=False):
    k = K()
    k.l += [".globl ka_kernel", ".p2align 8", ".type ka_kernel,@function", "ka_kernel:"]
    k.I("s_cmp_ge_u32 s2, 256")
    k.I("s_cbranch_scc1 KA_END")
    if gen.STAMPS: k.I("s_memrealtime s[98:99]")
    if gen.ENC: stamp(k, 0, 250)
    k.I("s_load_dwordx8 s[4:11], s[0:1], 0")
    k.I("s_load_dwordx4 s[12:15], s[0:1], 48")
    k.I("s_load_dwordx2 s[16:17], s[0:1], 88")
    k.I("s_load_dwordx2 s[18:19], s[0:1], 32")
    k.I("s_load_dwordx2 s[66:67], s[0:1], 64")
    k.I("s_load_dwordx4 s[72:75], s[0:1], 72")
    SC1 = " sc1" if fused else ""
    ONES = 236; LANE = 240; VL16 = 241; MASK = 242; DK = 243; DV = 245; VKL = 247; VVL = 248; JUNK = 249
    VKR = 252; VVR = 253; VPW = 254; VCNT = 255; VSL = 30; VSH = 31; VTK = 21; VPL = 22; VPA = 23; VSN = 24
    QACC = 0; XF = 128; SS = 160; TMP = 168; AXR = 176; AWQ = 178; AGU = 182; ACS = 186; DX = 190; DWQ = 198; DGU = 202
    T0 = 204
    AF = 0; GRM = 80; FACC = 128; SUMA = 224; CSA = 240
    g_, r_, c_, i_ = T0, T0 + 1, T0 + 2, T0 + 3
    t4, t5, t6 = T0 + 4, T0 + 5, T0 + 6
    k.I("v_lshrrev_b32 v1, 6, v0")
    k.I("v_and_b32 v%d, 63, v0", LANE)
    k.I("v_readfirstlane_b32 s48, v1")
    k.I("s_and_b32 s51, s2, 7")
    k.I("s_lshl_b32 s51, s51, 2")
    k.I("s_bfe_u32 s52, s2, 0x20003")
    k.I("s_add_u32 s49, s51, s52")
    k.I("s_lshr_b32 s50, s2, 5")
    SX, SWQ, SWG, SWU, SK, SV, SACT = 20, 24, 28, 32, 36, 40, 44
    k.I("v_lshrrev_b32 v%d, 4, v%d", g_, LANE)
    k.I("v_bfe_u32 v%d, v%d, 2, 2", r_, LANE)
    k.I("v_and_b32 v%d, 3, v%d", c_, LANE)
    k.I("v_and_b32 v%d, 15, v%d", i_, LANE)
    k.I("v_lshlrev_b32 v%d, 4, v%d", VL16, LANE)
    k.I("s_lshl_b32 s53, s50, 8")
    k.I("s_lshl_b32 s54, s48, 6")
    k.I("s_add_u32 s53, s53, s54")
    k.I("s_lshl_b32 s53, s53, 10")
    k.I("v_lshrrev_b32 v%d, 3, v%d", t4, LANE)
    k.I("v_lshlrev_b32 v%d, 10, v%d", t4, t4)
    k.I("v_add_u32 v%d, s53, v%d", t4, t4)
    k.I("v_and_b32 v%d, 7, v%d", t5, LANE)
    k.I("v_xor_b32 v%d, v%d, v%d", t5, t5, g_)
    k.I("v_xor_b32 v%d, 4, v%d", t6, t5)
    k.I("s_and_b32 s86, s49, 1")
    k.I("s_lshl_b32 s53, s86, 15")
    k.I("s_sub_u32 s54, 32768, s53")
    for i in range(8):
        k.I("v_lshl_add_u32 v%d, v%d, 4, v%d", DX + i, t5 if i % 2 == 0 else t6, t4)
        if i % 4: k.I("v_add_u32 v%d, %d, v%d", DX + i, 7168 * (i % 4), DX + i)
        k.I("v_add_u32 v%d, s%d, v%d", DX + i, 53 if i < 4 else 54, DX + i)
    k.I("s_lshl_b32 s53, s48, 17")
    k.I("s_lshl_b32 s54, s49, 8")
    k.I("s_add_u32 s53, s53, s54")
    k.I("v_lshlrev_b32 v%d, 13, v%d", t4, g_)
    k.I("v_add_u32 v%d, s53, v%d", t4, t4)
    k.I("v_xor_b32 v%d, v%d, v%d", t5, r_, g_)
    k.I("v_lshl_add_u32 v%d, v%d, 6, v%d", t4, t5, t4)
    k.I("v_lshl_add_u32 v%d, v%d, 4, v%d", DWQ, c_, t4)
    for i in range(1, 4): k.I("v_add_u32 v%d, %d, v%d", DWQ + i, (32768 - 1024) * i, DWQ)
    k.I("s_mul_i32 s53, s48, %d", 16 * 2752)
    k.I("s_lshr_b32 s54, s49, 1")
    k.I("s_mul_i32 s54, s54, 192")
    k.I("s_add_u32 s53, s53, s54")
    k.I("s_lshl_b32 s54, s86, 6")
    k.I("s_add_u32 s53, s53, s54")
    k.I("v_lshrrev_b32 v%d, 3, v%d", t4, LANE)
    k.I("v_mul_u32_u24 v%d, 2752, v%d", t4, t4)
    k.I("v_add_u32 v%d, s53, v%d", t4, t4)
    k.I("v_and_b32 v%d, 1, v%d", t5, LANE)
    k.I("v_lshl_add_u32 v%d, v%d, 4, v%d", t4, t5, t4)
    k.I("v_bfe_u32 v%d, v%d, 1, 2", t5, LANE)
    k.I("v_and_b32 v%d, 1, v%d", t6, g_)
    k.I("v_xor_b32 v%d, v%d, v%d", t5, t5, t6)
    k.I("v_lshl_add_u32 v%d, v%d, 5, v%d", DGU, t5, t4)
    k.I("v_xor_b32 v%d, 2, v%d", t5, t5)
    k.I("v_lshl_add_u32 v%d, v%d, 5, v%d", DGU + 1, t5, t4)
    k.I("v_add_u32 v%d, %d, v%d", DGU + 1, 8 * 2752 - 1024, DGU + 1)
    WSLOT = (65536, 98304, 0)
    XSLOT = (32768, 131072)
    k.I("s_add_u32 s89, s50, s49") if ROT else k.I("s_mov_b32 s89, 0")
    k.I("s_lshl_b32 s55, s48, 13")
    k.I("s_lshl_b32 s56, s48, 12")
    k.I("s_lshl_b32 s57, s48, 11")
    k.I("s_waitcnt lgkmcnt(0)")
    srd(k, SX, 4, 5, 2048 * 1024)
    srd(k, SWQ, 10, 11, 512 * 8192)
    srd(k, SWG, 12, 13, 512 * 2752)
    srd(k, SWU, 14, 15, 512 * 2752)
    def dmaX(c):
        o = []
        for i in range(8):
            if i == 0: o += [("s", "s_add_u32 s58, s89, %d" % c), ("s", "s_and_b32 s58, s58, 7"), ("s", "s_lshl_b32 s58, s58, 7")]
            if i % 4 == 0: o.append(("s", "s_add_u32 m0, s55, %d" % (XSLOT[c % 2] + 4096 * (i // 4))))
            o.append(("d", "buffer_load_dwordx4 v%d, s[%d:%d], s58 offen offset:%d lds" % (DX + i, SX, SX + 3, 1024 * (i % 4))))
        return o
    def dmaW(c):
        b = WSLOT[c % 3]
        o = [("s", "s_add_u32 s60, s89, %d" % c), ("s", "s_and_b32 s60, s60, 7"), ("s", "s_add_u32 m0, s56, %d" % b), ("s", "s_lshl_b32 s59, s60, 19")]
        for i in range(4): o.append(("d", "buffer_load_dwordx4 v%d, s[%d:%d], s59 offen offset:%d lds" % (DWQ + i, SWQ, SWQ + 3, 1024 * i)))
        o += [("s", "s_add_u32 m0, s57, %d" % (b + 16384)), ("s", "s_mul_i32 s60, s60, %d" % (64 * 2752))]
        for j in range(2): o.append(("d", "buffer_load_dwordx4 v%d, s[%d:%d], s60 offen offset:%d lds" % (DGU + j, SWG, SWG + 3, 1024 * j)))
        o += [("s", "s_add_u32 m0, s57, %d" % (b + 24576))]
        for j in range(2): o.append(("d", "buffer_load_dwordx4 v%d, s[%d:%d], s60 offen offset:%d lds" % (DGU + j, SWU, SWU + 3, 1024 * j)))
        return o
    def emit_now(o):
        m = Mix(k, o, 1); m.flush()
    k.I("s_lshl_b32 s84, s50, 8")
    k.I("s_lshl_b32 s54, s49, 3")
    k.I("s_add_u32 s84, s84, s54")
    k.I("s_lshl_b32 s54, s48, 1")
    k.I("s_add_u32 s84, s84, s54")
    k.I("s_lshl_b32 s53, s84, 10")
    for j in range(2): k.I("buffer_load_dwordx4 %s, v%d, s[%d:%d], s53 offen offset:%d", vr(XF + 4 * j), VL16, SX, SX + 3, 1024 * j)
    emit_now(dmaX(0)); emit_now(dmaW(0))
    k.I("s_getpc_b64 s[62:63]")
    k.L("KA_PC")
    k.I("s_sub_u32 s68, s62, KA_PC-ka_kernel")
    k.I("s_subb_u32 s69, s63, 0")
    k.I("s_and_b32 s69, s69, 0xffff")
    k.I("s_mov_b32 s70, TEXT_END-ka_kernel")
    k.I("s_mov_b32 s71, 0x20000")
    k.I("s_lshl_b32 s53, s52, 2")
    k.I("s_add_u32 s53, s53, s48")
    k.I("s_lshl_b32 s53, s53, 13")
    k.I("s_cmp_eq_u32 s50, 0")
    k.I("s_cselect_b32 s53, s53, 0x7f000000")
    k.I("v_lshlrev_b32 v%d, 7, v%d", t4, LANE)
    k.I("buffer_load_dword v%d, v%d, s[68:71], s53 offen", JUNK, t4)
    k.I("s_lshl_b32 s53, s49, 19")
    k.I("s_add_u32 s62, s6, s53")
    k.I("s_addc_u32 s63, s7, 0")
    srd(k, SK, 62, 63, 524288)
    k.I("s_add_u32 s62, s8, s53")
    k.I("s_addc_u32 s63, s9, 0")
    k.I("s_sub_u32 s62, s62, 8192")
    k.I("s_subb_u32 s63, s63, 0")
    srd(k, SV, 62, 63, 524288 + 8192)
    srd(k, SACT, 16, 17, ACT_BYTES)
    k.I("v_lshlrev_b32 v%d, 7, v%d", T0 + 7, LANE)
    k.I("s_mov_b32 s87, 1")
    k.I("s_lshl_b32 s53, s86, 8")
    k.I("v_lshlrev_b32 v%d, 3, v%d", T0 + 8, i_)
    k.I("v_add_u32 v%d, s53, v%d", T0 + 9, T0 + 8)
    k.I("s_sub_u32 s53, 256, s53")
    k.I("v_add_u32 v%d, s53, v%d", T0 + 8, T0 + 8)
    stamp_init(k, 0, 16, 17, 48)
    BW, BO, BP, BD = 4, 8, 12, 16
    k.I("s_bfe_u32 s53, s2, 0x20001")
    k.I("s_mul_i32 s54, s53, %d", 44 * 32768)
    k.I("s_add_u32 s62, s18, s54")
    k.I("s_addc_u32 s63, s19, 0")
    k.I("s_cmp_eq_u32 s53, 3")
    k.I("s_cselect_b32 s62, s66, s62")
    k.I("s_cselect_b32 s63, s67, s63")
    k.I("s_mov_b32 s54, %d", 44 * 32768)
    k.I("s_cselect_b32 s54, %d, s54", 43 * 32768)
    k.I("s_cmp_eq_u32 s53, 2")
    k.I("s_cselect_b32 s54, %d, s54", 40 * 32768)
    srd(k, BW, 62, 63, "s54")
    srd(k, BO, 72, 73, 2048 * 1024)
    k.I("s_add_u32 s62, s16, 0x%x", PART_OFF)
    k.I("s_addc_u32 s63, s17, 0")
    srd(k, BP, 62, 63, PF_REL + 8192 + 16384)
    srd(k, BD, 74, 75, 256)
    k.I("s_memrealtime s[62:63]")
    k.I("s_lshl_b32 s53, s2, 10")
    k.I("s_lshl_b32 s54, s48, 8")
    k.I("s_add_u32 s53, s53, s54")
    k.I("v_mov_b32 v%d, 0", t5)
    k.I("s_waitcnt lgkmcnt(0)")
    k.I("s_or_b32 s62, s62, 1")
    k.I("v_mov_b32 v%d, s62", t4)
    k.I("buffer_store_dword v%d, v%d, s[%d:%d], s53 offen sc1", t4, t5, BD, BD + 3)
    k.I("v_lshrrev_b32 v%d, 1, v%d", t4, i_)
    k.I("v_xor_b32 v%d, v%d, v%d", t4, t4, g_)
    k.I("v_lshlrev_b32 v%d, 7, v%d", t5, i_)
    k.I("v_add_u32 v%d, s55, v%d", t5, t5)
    for ks in range(2):
        k.I("v_xor_b32 v%d, %d, v%d", t6, 4 * ks, t4)
        k.I("v_lshl_add_u32 v%d, v%d, 4, v%d", t6, t6, t5)
        k.I("v_add_u32 v%d, %d, v%d", AXR + ks, XSLOT[0], t6)
    k.I("v_lshl_add_u32 v%d, v%d, 3, v%d", t4, g_, r_)
    k.I("v_lshlrev_b32 v%d, 8, v%d", t5, t4)
    k.I("v_lshl_add_u32 v%d, v%d, 4, v%d", t5, c_, t5)
    k.I("v_add_u32 v%d, %d, v%d", t5, WSLOT[0], t5)
    for ksd in range(4):
        k.I("v_xor_b32 v%d, %d, v%d", t6, ksd, r_)
        k.I("v_lshl_add_u32 v%d, v%d, 6, v%d", AWQ + ksd, t6, t5)
    k.I("v_xor_b32 v%d, s48, v%d", t6, r_)
    k.I("v_lshl_add_u32 v%d, v%d, 6, v%d", ACS, t6, t5)
    k.I("v_add_u32 v%d, 8, v%d", ACS + 1, ACS)
    k.I("v_lshlrev_b32 v%d, 7, v%d", t5, t4)
    k.I("v_lshl_add_u32 v%d, v%d, 3, v%d", t5, c_, t5)
    k.I("v_add_u32 v%d, %d, v%d", t5, 16384 + WSLOT[0], t5)
    k.I("v_bfe_u32 v%d, v%d, 3, 2", t4, LANE)
    k.I("s_lshl_b32 s53, s86, 1")
    k.I("v_xor_b32 v%d, s53, v%d", t4, t4)
    for ft in range(4):
        k.I("v_xor_b32 v%d, %d, v%d", t6, ft, t4)
        k.I("v_lshl_add_u32 v%d, v%d, 5, v%d", AGU + ft, t6, t5)
    k.I("v_xor_b32 v%d, s48, v%d", t6, t4)
    k.I("v_lshl_add_u32 v%d, v%d, 5, v%d", ACS + 2, t6, t5)
    k.I("v_add_u32 v%d, 8192, v%d", ACS + 3, ACS + 2)
    k.I("s_lshl_b32 s53, s48, 11")
    k.I("v_lshlrev_b32 v%d, 8, v%d", t4, g_)
    k.I("v_add_u32 v%d, s53, v%d", t4, t4)
    k.I("v_xor_b32 v%d, v%d, v%d", t5, i_, g_)
    k.I("v_lshl_add_u32 v%d, v%d, 4, v%d", DK, t5, t4)
    k.I("v_add_u32 v%d, 8192, v%d", DK + 1, DK)
    k.I("s_lshr_b32 s53, s48, 1")
    k.I("s_lshl_b32 s53, s53, 3")
    k.I("s_and_b32 s54, s48, 1")
    k.I("s_lshl_b32 s54, s54, 1")
    k.I("s_add_u32 s53, s53, s54")
    k.I("s_lshl_b32 s53, s53, 8")
    k.I("v_lshrrev_b32 v%d, 1, v%d", t4, g_)
    k.I("v_lshlrev_b32 v%d, 12, v%d", t4, t4)
    k.I("v_and_b32 v%d, 1, v%d", t5, g_)
    k.I("v_lshl_add_u32 v%d, v%d, 10, v%d", t4, t5, t4)
    k.I("v_lshl_add_u32 v%d, v%d, 4, v%d", t4, i_, t4)
    k.I("v_add_u32 v%d, s53, v%d", DV, t4)
    k.I("v_add_u32 v%d, 8192, v%d", DV + 1, DV)
    k.I("v_mul_u32_u24 v%d, 2112, v%d", t4, r_)
    k.I("v_lshl_add_u32 v%d, v%d, 8, v%d", t4, c_, t4)
    k.I("v_xor_b32 v%d, v%d, v%d", t5, g_, c_)
    k.I("v_lshl_add_u32 v%d, v%d, 4, v%d", VKL, t5, t4)
    k.I("v_bfe_u32 v%d, v%d, 2, 3", t4, LANE)
    k.I("v_mul_u32_u24 v%d, 1056, v%d", t4, t4)
    k.I("v_lshrrev_b32 v%d, 5, v%d", t5, LANE)
    k.I("v_lshl_add_u32 v%d, v%d, 9, v%d", t4, t5, t4)
    k.I("v_lshl_add_u32 v%d, v%d, 3, v%d", VVL, c_, t4)
    k.I("s_mul_i32 s61, s48, 2112")
    k.I("s_lshl_b32 s53, s48, 2")
    k.I("s_add_u32 s53, s53, %d", PG_LDS - 65536 * 2)
    k.I("v_add_u32 v%d, s53, v%d", VPW, VL16)
    k.I("v_add_u32 v%d, 0x20000, v%d", VPW, VPW)
    k.I("v_mov_b32 v%d, 0xffff0000", MASK)
    for i in range(4): k.I("v_mov_b32 v%d, 0x3f803f80", ONES + i)
    k.I("s_lshl_b32 s53, s50, 2")
    k.I("s_add_u32 s53, s53, s48")
    k.I("s_mul_i32 s65, s53, %d", NKS * 4096)
    def dmaKV(j, mbase, soff, skip_odd=False):
        ms, mc = mbase
        o = []
        if soff is None:
            o.append(("s", "s_mov_b32 s64, %d" % (j * 16384))); soff = "s64"
        for sub in range(2):
            o.append(("s", "s_add_u32 m0, %s, %d" % (ms, mc + KOFF[sub])))
            for e in range(2): o.append(("d", "buffer_load_dwordx4 v%d, s[%d:%d], %s offen offset:%d lds" % (DK + sub, SK, SK + 3, soff, 1024 * e)))
        for sub, off in ((0, VOFF_ODD), (1, VOFF_EVEN)):
            if sub == 0 and skip_odd: continue
            for e in range(2):
                o.append(("s", "s_add_u32 m0, %s, %d" % (ms, mc + off + 800 * e)))
                o.append(("d", "buffer_load_dwordx4 v%d, s[%d:%d], %s offen offset:%d lds" % (DV + sub, SV, SV + 3, soff, 256 * e)))
        return o
    def areg(T): return AWQ + (T >> 1) if T < 8 else (AGU + ((T - 8) >> 1) if T < 16 else ACS + (T - 16))
    def facc(T, qt): return FACC + 16 * (T - 8) + 4 * qt if T < 12 else FACC + 64 + 8 * (T - 12) + 4 * qt
    DBL = [10, 11, 9, 16, 17, 18, 19, 12, 13, 14]
    def afr(T, ks): return AF + 4 * (20 + DBL.index(T) if (T in DBL and ks == 1) else T)
    def areads(T, ks):
        o = []
        for e in range(2):
            d = ar(afr(T, ks) + 2 * e, 2)
            if T < 8: off = (32 * ks + 4 * e) * 256 + 8 * (T & 1)
            elif T < 16: off = (32 * ks + 4 * e) * 128 + 8192 * ((T - 8) & 1)
            elif T < 18: off = (32 * ks + 4 * e) * 256
            else: off = (32 * ks + 4 * e) * 128
            o.append("ds_read_b64_tr_b16 %s, v%d offset:%d" % (d, areg(T), off))
        return o
    def xreads(ks):
        return ["ds_read_b128 %s, v%d offset:%d" % (vr(XF + 16 * ks + 4 * qt), AXR + ks, 2048 * qt) for qt in range(4)]
    ZR = 232
    for i in range(4): k.I("v_mov_b32 v%d, 0", ZR + i)
    k.I("s_nop 1")
    M32 = "v_mfma_f32_32x32x16_bf16"
    RS = XF + 8; GR = SS
    k.I("s_mov_b32 s53, 0x3b000000")
    k.I("s_mov_b32 s54, 0x3727c5ac")
    for j in range(4): k.I("v_mov_b32 v%d, 0", RS + j)
    k.I("v_lshrrev_b32 v%d, 5, v%d", GR + 2, LANE)
    k.I("v_lshlrev_b32 v%d, 3, v%d", GR + 2, GR + 2)
    k.I("s_waitcnt vmcnt(18)")
    for d in range(4):
        for j in range(2):
            k.I("v_dot2c_f32_bf16 v%d, v%d, v%d", RS + j, ONES, XF + 4 * j + d)
            k.I("v_dot2c_f32_bf16 v%d, v%d, v%d", RS + 2 + j, XF + 4 * j + d, XF + 4 * j + d)
    k.I("s_nop 3")
    for r in (RS, RS + 2): k.I("v_permlane32_swap_b32 v%d, v%d", r, r + 1)
    k.I("s_nop 0")
    for r in (RS, RS + 2): k.I("v_add_f32 v%d, v%d, v%d", r, r, r + 1)
    for r in (RS, RS + 2): k.I("v_mov_b32 v%d, v%d", r + 1, r)
    k.I("s_nop 1")
    for r in (RS, RS + 2): k.I("v_permlane16_swap_b32 v%d, v%d", r, r + 1)
    k.I("s_nop 0")
    for r in (RS, RS + 2): k.I("v_add_f32 v%d, v%d, v%d", r, r, r + 1)
    for sh in (8, 4, 2, 1):
        k.I("s_nop 0")
        for r in (RS, RS + 2): k.I("v_add_f32_dpp v%d, v%d, v%d row_ror:%d row_mask:0xf bank_mask:0xf", r, r, r, sh)
    k.I("v_mul_f32 v%d, s53, v%d", RS, RS)
    k.I("v_mul_f32 v%d, s53, v%d", RS + 2, RS + 2)
    k.I("v_fma_f32 v%d, -v%d, v%d, v%d", RS + 2, RS, RS, RS + 2)
    k.I("v_max_f32 v%d, 0, v%d", RS + 2, RS + 2)
    k.I("v_cvt_pk_bf16_f32 v%d, v%d, v%d", RS + 2, RS + 2, RS + 2)
    k.I("v_and_b32 v%d, v%d, v%d", RS + 2, MASK, RS + 2)
    k.I("v_add_f32 v%d, s54, v%d", RS + 2, RS + 2)
    k.I("v_cvt_pk_bf16_f32 v%d, v%d, v%d", RS + 2, RS + 2, RS + 2)
    k.I("v_and_b32 v%d, v%d, v%d", RS + 2, MASK, RS + 2)
    k.I("v_sqrt_f32 v%d, v%d", RS + 2, RS + 2)
    k.I("s_nop 0")
    k.I("v_cvt_pk_bf16_f32 v%d, v%d, v%d", GR, RS + 2, RS)
    m = Mix(k, dmaX(1) + dmaW(1), 1)
    for i in range(8): m.I("%s %s, %s, %s, 0", M32, vr(QACC + 16 * i, 16), vr(ZR), vr(ZR))
    for i in range(8, 16): m.I("%s %s, %s, %s, 0", M32, ar(16 * i, 16), vr(ZR), vr(ZR))
    m.flush()
    SGC, SWM, SWD, SXM = 78, 79, 80, 81
    k.I("s_mov_b32 s%d, 0", SGC)
    k.I("s_mov_b32 s%d, %d", SWM, WSLOT[0])
    k.I("s_mov_b32 s%d, %d", SWD, WSLOT[1] - WSLOT[0])
    k.I("s_add_u32 s%d, s55, %d", SXM, XSLOT[0])
    k.I("s_mov_b32 s82, 32768")
    k.I("s_mov_b32 s83, 0x%x", (-98304) & 0xffffffff)
    k.I("s_waitcnt vmcnt(18)")
    k.I("s_barrier")
    stamp(k, 1, 250)
    k.ext(xreads(0))
    m = Mix(k, dmaW(2), 4)
    ORDER = [16, 17, 18, 19] + list(range(8)) + [12, 13, 14, 15, 8, 9, 10, 11]
    for T in ORDER:
        for x in areads(T, 0): m.I(x)
        if T % 4 == 3: k.I("s_waitcnt lgkmcnt(6)")
    m.flush()
    k.I("s_add_u32 s58, s89, 2")
    k.I("s_and_b32 s58, s58, 7")
    k.I("s_lshl_b32 s58, s58, 7")
    k.I("s_add_u32 s89, s89, 3")
    k.I("s_and_b32 s89, s89, 7")
    k.I("s_lshl_b32 s59, s89, 19")
    k.I("s_mul_i32 s60, s89, %d", 64 * 2752)
    k.I("s_waitcnt lgkmcnt(6)")
    extra_vm = 1 if gen.STAMPS else 0
    NGG = 60
    k.l.append(".p2align 6")
    k.L("KA_GEMM")
    for ks in range(2):
        xs = XF + 16 * ks
        if ks == 1:
            k.I("s_waitcnt vmcnt(16) lgkmcnt(0)")
            k.I("s_barrier")
        mf = []; pre = [[] for _ in range(NGG)]; va = [[] for _ in range(NGG)]
        order = ORDER
        last_use = {}
        for T in order:
            if T >= 16:
                d = ar(CSA + 4 * (T - 16))
                mf.append("%s %s, %s, %s, %s" % (MF, d, ar(afr(T, ks)), vr(ONES), d))
            else:
                for qt in range(4 if T < 12 else 2):
                    d = vr(QACC + 16 * T + 4 * qt) if T < 8 else ar(facc(T, qt))
                    mf.append("%s %s, %s, %s, %s" % (MF, d, ar(afr(T, ks)), vr(xs + 4 * qt), d))
            last_use[T] = len(mf) - 1
        assert len(mf) == NGG
        cap = [2] * NGG
        q = []
        dgaps = [14, 18, 22, 26, 30, 34, 40, 46] if ks == 0 else [2, 6, 10, 14, 18, 22, 26, 30]
        used = set(dgaps); lastread = {}
        def place(g, x, rg):
            while g in used: g += 1
            assert g < NGG - 5, g
            used.add(g); pre[g].append(x); cap[g] -= 1; lastread[rg] = max(g, lastread.get(rg, 0))
        for x in xreads(1 - ks): place(0, x, AXR + 1 - ks)
        for T in order:
            if T not in DBL:
                for x in areads(T, 1 - ks): place(last_use[T], x, areg(T))
        for T in order:
            if T in DBL:
                for x in areads(T, 1 - ks): place(0, x, areg(T))
        if ks == 1:
            dm = [("s", "s_add_u32 m0, s56, s%d" % SWM)]
            for i in range(4): dm.append(("d", "buffer_load_dwordx4 v%d, s[%d:%d], s59 offen offset:%d lds" % (DWQ + i, SWQ, SWQ + 3, 1024 * i)))
            dm += [("s", "s_add_u32 s53, s57, s%d" % SWM), ("s", "s_add_u32 m0, s53, 16384")]
            for j in range(2): dm.append(("d", "buffer_load_dwordx4 v%d, s[%d:%d], s60 offen offset:%d lds" % (DGU + j, SWG, SWG + 3, 1024 * j)))
            dm += [("s", "s_add_u32 m0, s53, 24576")]
            for j in range(2): dm.append(("d", "buffer_load_dwordx4 v%d, s[%d:%d], s60 offen offset:%d lds" % (DGU + j, SWU, SWU + 3, 1024 * j)))
            book = ["s_add_u32 s89, s89, 1", "s_and_b32 s89, s89, 7", "s_cmp_ge_u32 s%d, 4" % SGC, "s_cselect_b32 s53, 64, s89",
                    "s_lshl_b32 s59, s53, 19", "s_mul_i32 s60, s53, %d" % (64 * 2752),
                    "s_cmp_eq_u32 s%d, 65536" % SWM, "s_cselect_b32 s%d, s83, 65536" % SWD, "s_cselect_b32 s54, 98304, 0",
                    "s_cmp_eq_u32 s%d, 0" % SWM, "s_cselect_b32 s%d, s82, s%d" % (SWD, SWD), "s_cselect_b32 s%d, 65536, s54" % SWM,
                    "s_add_u32 s%d, s%d, 1" % (SGC, SGC), "s_cmp_lt_u32 s%d, 8" % SGC]
            gmin = 0
        else:
            dm = []
            for i in range(8):
                if i % 4 == 0: dm.append(("s", "s_add_u32 m0, s%d, %d" % (SXM, 4096 * (i // 4))))
                dm.append(("d", "buffer_load_dwordx4 v%d, s[%d:%d], s58 offen offset:%d lds" % (DX + i, SX, SX + 3, 1024 * (i % 4))))
            book = ["s_add_u32 s58, s58, 128", "s_and_b32 s58, s58, 1023", "s_xor_b32 s%d, s%d, 0x%x" % (SXM, SXM, XSLOT[0] ^ XSLOT[1]),
                    "s_cmp_ge_u32 s%d, 5" % SGC, "s_cselect_b32 s58, 0x7f000000, s58"]
            gmin = 20
            assert sum(1 for gg in range(lastread[AXR + 1] + 1, 12) for y in pre[gg] if y.startswith('ds_')) >= 6
        pend = []; di = 0
        for t, x in dm:
            if t == 's': pend.append(x)
            else:
                g = dgaps[di]; di += 1
                for j, sx in enumerate(pend): pre[g - len(pend) + j].insert(0, sx)
                pre[g].append(x); cap[g] = 0
                pend = []
        assert dgaps[-1] + len(book) < NGG
        for j, x in enumerate(book): pre[NGG - len(book) + j].insert(0, x)
        for g in (12, 28, 43): pre[g].insert(0, "s_waitcnt lgkmcnt(6)")
        if ks == 1: pre[NGG - 1].append("s_waitcnt lgkmcnt(0)")
        ops = []
        if ks == 0:
            for rg, g in sorted(lastread.items(), key=lambda t: t[1]):
                if rg == AXR + 1: continue
                gg = g
                while gg < NGG - 1 and cap[gg] <= 0: gg += 1
                va[gg].append("v_add_u32 v%d, s%d, v%d" % (rg, SWD, rg)); cap[gg] -= 1
            for rg in (AXR, AXR + 1):
                gg = lastread[AXR + 1]
                while gg < NGG - 1 and cap[gg] <= 0: gg += 1
                va[gg].append("v_xor_b32 v%d, 0x%x, v%d" % (rg, XSLOT[0] ^ XSLOT[1], rg)); cap[gg] -= 1
        g = 0
        for x in ops:
            while g < NGG - 1 and cap[g] <= 0: g += 1
            va[g].append(x); cap[g] -= 1
        assert min(cap) >= 0
        weave(k, mf, pre, va)
    k.I("s_cbranch_scc0 KA_GEND")
    k.I("s_cmp_lg_u32 s%d, s87", SGC)
    k.I("s_cbranch_scc1 KA_GEMM")
    k.I("s_branch KA_GSIDE")
    k.L("KA_GEND")
    stamp(k, 2, 250)
    hst = []
    CRA = 215
    k.I("v_lshlrev_b32 v%d, 4, v%d", CRA, g_)
    k.I("v_add_u32 v%d, %d, v%d", CRA, CS_LDS, CRA)
    k.I("v_add_u32 v%d, s55, v%d", t5, CRA)
    AB = 216
    k.I("s_mov_b32 s62, 0x%x", QSCALE)
    SG = 164
    def stload():
        for qt in range(4): k.I("buffer_load_dwordx2 %s, v%d, s[%d:%d], s85 offen offset:%d sc1", vr(SG + 2 * qt, 2), T0 + 9 if qt < 2 else T0 + 8, BP, BP + 3, 128 * (qt % 2))
    k.I("s_mov_b32 s89, 0")
    k.I("s_waitcnt vmcnt(0) lgkmcnt(0)")
    for j in range(4): k.I("ds_write_b128 v%d, %s offset:%d", t5, ar(CSA + 4 * j), 64 * j)
    k.L("KA_STC")
    Q4 = range(4)
    for qt in Q4: k.I("v_xor_b32 v%d, s88, v%d", 172 + qt, SG + 2 * qt + 1)
    k.I("v_or3_b32 v172, v172, v173, v174")
    k.I("v_or_b32 v172, v172, v175")
    k.I("v_cmp_ne_u32 vcc, 0, v172")
    for qt in Q4: k.I("v_lshlrev_b32 v%d, 16, v%d", 172 + qt, SG + 2 * qt)
    k.I("s_cbranch_vccnz KA_STW")
    k.L("KA_STOK")
    for qt in Q4: k.I("v_rcp_f32 v%d, v%d", 172 + qt, 172 + qt)
    for qt in Q4: k.I("v_and_b32 v%d, v%d, v%d", SG + 2 * qt, MASK, SG + 2 * qt)
    for qt in Q4: k.I("v_sub_f32 v%d, 0, v%d", AB + 2 * qt + 1, SG + 2 * qt)
    for qt in Q4: k.I("v_sub_f32 v%d, 0, v%d", AB + 8 + 2 * qt + 1, SG + 2 * qt)
    for qt in Q4: k.I("v_mul_f32 v%d, v%d, v%d", AB + 2 * qt, 172 + qt, 172 + qt)
    for qt in Q4: k.I("v_mul_f32 v%d, s62, v%d", AB + 8 + 2 * qt, 172 + qt)
    k.I("s_waitcnt lgkmcnt(0)")
    k.I("s_barrier")
    stamp(k, 7, 250)
    CS = 176
    for T in range(8): k.I("ds_read_b128 %s, v%d offset:%d", vr(CS + 4 * T), CRA, 8192 * (T >> 1) + 64 * (T & 1))
    side = dmaKV(0, ("s61", 0), None, skip_odd=True) + dmaKV(1, ("s61", SLOT), None)
    late = dmaKV(2, ("s61", 2 * SLOT), None) + dmaKV(3, ("s61", 3 * SLOT), None)
    m = Mix(k, side, 16)
    m.pop(); m.pop(); m.pop(); m.pop()
    stamp(k, 8, 250)
    k.I("s_waitcnt lgkmcnt(0)")
    QF = 128
    PKB = "op_sel:[0,1,0] op_sel_hi:[1,1,1]"
    PKA = "op_sel:[0,0] op_sel_hi:[1,0]"
    for q4 in range(4):
        for T in range(8):
            for j in range(2):
                a = QACC + 16 * T + 4 * q4 + 2 * j
                m.I("v_pk_fma_f32 %s, %s, %s, %s %s", vr(a, 2), vr(CS + 4 * T + 2 * j, 2), vr(AB + 8 + 2 * q4, 2), vr(a, 2), PKB)
    for q4 in range(4):
        for T in range(8):
            for j in range(2):
                a = QACC + 16 * T + 4 * q4 + 2 * j
                m.I("v_pk_mul_f32 %s, %s, %s %s", vr(a, 2), vr(a, 2), vr(AB + 8 + 2 * q4, 2), PKA)
        for T in range(8):
            for j in range(2):
                a = QACC + 16 * T + 4 * q4 + 2 * j
                m.I("v_cvt_pk_bf16_f32 v%d, v%d, v%d", QF + 16 * q4 + 4 * (T >> 1) + 2 * (T & 1) + j, a, a + 1)
    stamp(k, 9, 250)
    CSF = 96
    for T in range(8): k.I("ds_read_b128 %s, v%d offset:%d", vr(CSF + 4 * T), CRA, 8192 * (T >> 1) + 128 + 64 * (T & 1))
    k.I("ds_write_b32 v%d, v%d", VPW, ZR)
    k.I("s_lshl_b32 s53, s86, 11")
    k.I("v_add_u32 v%d, s53, v%d", VSL, VL16)
    k.I("s_sub_u32 s53, 2048, s53")
    k.I("v_add_u32 v%d, s53, v%d", VSH, VL16)
    n = 0
    for pr in range(2):
        k.I("s_lshr_b32 s53, s49, 1")
        k.I("s_mul_i32 s53, s53, 3")
        if pr == 0:
            k.I("s_lshl_b32 s54, s86, 1")
            k.I("s_add_u32 s53, s53, s54")
        else: k.I("s_add_u32 s53, s53, 1")
        k.I("s_lshl_b32 s54, s53, 12")
        k.I("s_add_u32 s54, s54, s65")
        k.I("s_add_u32 s54, s54, %d", 128 * 4096)
        k.I("s_cmp_lt_u32 s53, 43")
        k.I("s_cselect_b32 s77, s54, 0x7f000000")
        for q0 in range(0, 4 if pr == 0 else 2, 2):
            us = [(q0 + j_, 32 + 16 * j_, 64 + 4 * ((n + j_) % 6)) for j_ in range(2)]; n += 2
            for q4, H, O4 in us:
                for t4_ in range(4):
                    f2, up = t4_ // 2, t4_ % 2
                    a = facc(8 + 2 * (2 * pr + f2) + up, q4)
                    for r in range(4): m.I("v_accvgpr_read_b32 v%d, a%d", H + 4 * (2 * up + f2) + r, a + r)
            if n == 2: k.I("s_waitcnt lgkmcnt(0)")
            for q4, H, O4 in us:
                for t4_ in range(4):
                    f2, up = t4_ // 2, t4_ % 2
                    for j in range(2):
                        d = H + 4 * (2 * up + f2) + 2 * j
                        m.I("v_pk_fma_f32 %s, %s, %s, %s %s", vr(d, 2), vr(CSF + 4 * (2 * (2 * pr + f2) + up) + 2 * j, 2), vr(AB + 2 * q4, 2), vr(d, 2), PKB)
            for q4, H, O4 in us:
                for j in range(4): m.I("v_pk_mul_f32 %s, %s, %s", vr(H + 2 * j, 2), vr(H + 2 * j, 2), vr(H + 8 + 2 * j, 2))
            for q4, H, O4 in us:
                for j in range(4): m.I("v_pk_mul_f32 %s, %s, %s %s", vr(H + 2 * j, 2), vr(H + 2 * j, 2), vr(AB + 2 * q4, 2), PKA)
            for q4, H, O4 in us:
                for j in range(4): m.I("v_cvt_pk_bf16_f32 v%d, v%d, v%d", O4 + j, H + 2 * j, H + 2 * j + 1)
                hst.append("buffer_store_dwordx4 %s, v%d, s[%d:%d], s77 offen offset:%d%s" % (vr(O4), VSL if q4 < 2 else VSH, SACT, SACT + 3, 1024 * (q4 % 2), SC1))
            if not m.side:
                k.ext(hst); hst.clear()
        m.flush(); k.ext(hst); hst.clear()
    stamp(k, 3, 250)
    def Sreg(buf, h, qt, kt): return 32 + 32 * buf + 16 * h + 8 * qt + 4 * kt
    NM = 96; PP = 112; EE = 192; TS = 200; LL = 204; VTHR = 208; VMX = 209; RT = 0; LM = 212; FL = 228
    E = lambda i: EE + (i % 8)
    def fr(p, kind, i): return 'a', {(0, 'K'): 192, (0, 'V'): 224, (1, 'K'): 128, (1, 'V'): 160}[(p, kind)] + 4 * i
    def R(t, n=4): return vr(t[1], n, t[0])
    def kreads(p, sub): return ["ds_read_b128 %s, v%d offset:%d" % (R(fr(p, 'K', i)), VKR, KOFF[sub] + (i // 4) * 1024 + (i % 4) * 64) for i in range(8)]
    def vreads(p, off):
        o = []
        for i in range(16):
            t = fr(p, 'V', i // 2)
            o.append("ds_read_b64_tr_b16 %s, v%d offset:%d" % (R((t[0], t[1] + 2 * (i % 2)), 2), VVR, off + (i % 2) * 256 + (i // 2) * 32))
        return o
    def qk(p, buf, h, c0=None):
        mm = []
        for qt in range(2):
            for kt in range(2):
                d = Sreg(buf, h, qt, kt)
                for ks in range(4):
                    c = (vr(NM + 8 * h + 4 * qt) if c0 is None else c0) if ks == 0 else vr(d)
                    mm.append("%s %s, %s, %s, %s" % (MF, vr(d), R(fr(p, 'K', kt * 4 + ks)), vr(QF + 32 * h + 16 * qt + 4 * ks), c))
        return mm
    def pv(p, h):
        mm = []
        for dt in range(8):
            for qt in range(2):
                acc = 64 * h + 32 * qt + 4 * dt
                mm.append("%s %s, %s, %s, %s" % (MF, ar(acc), R(fr(p, 'V', dt)), vr(PP + 8 * h + 4 * qt), ar(acc)))
        return mm
    SRD_, SMD, SOF, SCN = 72, 73, 74, 75
    def preloop(n0, n1, first_ops, zero=False, late=()):
        k.I("v_mov_b32 v%d, v%d", VKR, VKL)
        k.I("v_mov_b32 v%d, v%d", VVR, VVL)
        zq = ["%s %s, %s, %s, 0" % (M32, ar(16 * i, 16), vr(ZR), vr(ZR)) for i in range(8)] if zero else []
        k.ext(zq[:3])
        k.I("s_waitcnt vmcnt(%d)", n0)
        k.I("s_barrier")
        rd = kreads(1, 0) + kreads(0, 1)[:6]
        for i, x in enumerate(rd):
            if i % 3 == 0 and zq[3:]: k.I(zq.pop(3))
            k.I(x)
        k.I("s_waitcnt lgkmcnt(6)")
        rest = kreads(0, 1)[6:] + vreads(0, VOFF_EVEN)
        mm = qk(1, 0, 0, c0="0") + qk(1, 0, 1, c0="0")
        SB_ = [Sreg(0, q4 // 2, q4 % 2, 0) for q4 in range(4)]
        def mx(q4): return ["v_max3_f32 v%d, v%d, v%d, v%d" % (RT + q4, SB_[q4], SB_[q4] + 1, SB_[q4] + 2), "v_max3_f32 v%d, v%d, v%d, v%d" % (RT + q4, RT + q4, SB_[q4] + 3, SB_[q4] + 4),
                            "v_max3_f32 v%d, v%d, v%d, v%d" % (RT + q4, RT + q4, SB_[q4] + 5, SB_[q4] + 6), "v_max_f32 v%d, v%d, v%d" % (RT + q4, RT + q4, SB_[q4] + 7)]
        fill = {}
        for i in range(16): fill[i] = ["v_mov_b32 v%d, 0" % (LM + i)]
        for q4 in range(3):
            for j, x in enumerate(mx(q4)): fill.setdefault(8 * q4 + 12 + j, []).append(x)
        ml = Mix(k, late, 99)
        for i, x in enumerate(mm):
            k.I(x)
            if i % 3 == 2: ml.pop()
            elif rest: k.I(rest.pop(0))
            k.ext(fill.get(i, []))
        for sw in ("v_permlane32_swap_b32", "v_permlane16_swap_b32"):
            qs = range(3) if sw.endswith("32_swap_b32") else range(4)
            for q4 in qs: k.I("v_mov_b32 v%d, v%d", RT + 4 + q4, RT + q4)
            k.I("s_nop 0")
            for q4 in qs: k.I("%s v%d, v%d", sw, RT + q4, RT + 4 + q4)
            for q4 in qs: k.I("v_max_f32 v%d, v%d, v%d", RT + q4, RT + q4, RT + 4 + q4)
            if len(qs) == 3:
                k.ext(mx(3))
                k.I("v_mov_b32 v%d, v%d", RT + 7, RT + 3)
                k.I("s_nop 1")
                k.I("%s v%d, v%d", sw, RT + 3, RT + 7)
                k.I("s_nop 0")
                k.I("v_max_f32 v%d, v%d, v%d", RT + 3, RT + 3, RT + 7)
        for q4 in range(4):
            for i in range(8):
                k.I("v_sub_f32 v%d, v%d, v%d", SB_[q4] + i, SB_[q4] + i, RT + q4)
                if i % 4 == 3: ml.pop()
        ml.flush()
        nm_ops = ["v_sub_f32 v%d, 0, v%d" % (NM + 4 * q4 + i, RT + q4) for q4 in range(4) for i in range(4)]
        for x in first_ops:
            k.I(x)
            if x.startswith("v_exp"): k.I(nm_ops.pop() if nm_ops else "s_nop 0")
        k.ext(nm_ops)
        k.I("s_mov_b32 s%d, %d", SRD_, SLOT)
        k.I("s_mov_b32 s%d, s61", SMD)
        k.I("s_add_u32 s76, s61, %d", 4 * SLOT)
        k.I("s_mov_b32 s%d, %d", SOF, 4 * 16384)
        k.I("s_mov_b32 s%d, 0", SCN)
        k.I("v_add_u32 v%d, s%d, v%d", VKR, SRD_, VKL)
        k.I("v_add_u32 v%d, s%d, v%d", VVR, SRD_, VVL)
        k.I("s_waitcnt vmcnt(%d) lgkmcnt(0)", n1)
    book = ["s_add_u32 s%d, s%d, 16384" % (SOF, SOF), "s_add_u32 s%d, s%d, %d" % (SMD, SMD, SLOT), "s_cmp_ge_u32 s%d, s76" % SMD, "s_cselect_b32 s%d, s61, s%d" % (SMD, SMD),
            "s_add_u32 s%d, s%d, %d" % (SRD_, SRD_, SLOT), "s_cmp_ge_u32 s%d, %d" % (SRD_, 4 * SLOT), "s_cselect_b32 s%d, 0, s%d" % (SRD_, SRD_),
            "s_add_u32 s%d, s%d, 1" % (SCN, SCN)]
    mf = []; pstart = []
    for p in range(2):
        for h in range(2):
            pstart.append(len(mf))
            mf += qk(p, 1 - p, h) + pv(p, h)
            for qt in range(2):
                l = LM + 4 * (2 * h + qt)
                mf.append("%s %s, %s, %s, %s" % (MF, vr(l), vr(ONES), vr(PP + 8 * h + 4 * qt), vr(l)))
    NG = len(mf); PL = NG // 4
    pre = [[] for _ in range(NG)]; va = [[] for _ in range(NG)]; cap = [2] * NG
    dm = dmaKV(0, ("s%d" % SMD, 0), "s%d" % SOF)
    gd = 5; pend = []
    for t, x in dm:
        if t == 's': pend.append(x)
        else:
            for j, sx in enumerate(pend): pre[gd - len(pend) + j].append(sx)
            pre[gd].append(x); cap[gd] = 0; pend = []
            gd += 14
    GPOST, GRD, GCHK = NG - 22, NG - 10, NG - 4
    fixed = {}
    if soft:
        for g in (GPOST, GRD, GCHK, GCHK + 2): cap[g] = 0
    isexp = set(); simple = []; first_ops = []; tail1 = []; st2 = []
    for ph in range(4):
        p, h = ph // 2, ph % 2
        o = 1 - h; buf = p if h == 0 else 1 - p
        S = Sreg(buf, o, 0, 0); P = PP + 8 * o
        g0 = pstart[ph] + shift
        free = [g0 + j for j in range(PL) if cap[(g0 + j) % NG] == 2]
        eg = [free[(i * len(free)) // 16] for i in range(16)]
        for e in range(16):
            x = "v_exp_f32 v%d, v%d" % (E(e), S + e)
            va[eg[e] % NG].append(x); cap[eg[e] % NG] = 0; isexp.add(eg[e] % NG)
            if ph == 3 and eg[e] < NG: first_ops.append((eg[e], x))
            if ph == 1 and eg[e] >= 2 * PL: tail1.append((eg[e], x))
            if ph == 2: st2.append((eg[e], x))
            if e % 2 == 1: simple.append((eg[e] + 1, ph, "v_cvt_pk_bf16_f32 v%d, v%d, v%d" % (P + e // 2, E(e - 1), E(e))))
    for r, ph, x in simple:
        g = r
        while cap[g % NG] <= 0: g += 1
        assert g < r + 6
        va[g % NG].append(x); cap[g % NG] -= 1
        if ph == 3 and g < NG: first_ops.append((g + 0.5, x))
        if ph == 1 and g >= 2 * PL: tail1.append((g + 0.5, x))
        if ph == 2: st2.append((g + 0.5, x))
    first_ops = [x for _, x in sorted(first_ops)]
    lastds = 0
    for p in range(2):
        ds = kreads(1 - p, p) + vreads(1 - p, VOFF_ODD if p == 0 else VOFF_EVEN)
        lo, hi = p * 2 * PL + 1, (2 * PL - 6 if p == 0 else (GPOST - 5 if soft else NG - 6))
        c1 = [g for g in range(lo, hi) if cap[g] >= 1]
        c2 = [g for g in range(lo, hi) if cap[g] >= 2]
        if len(c1) >= len(ds): cand = [c1[(i * len(c1)) // len(ds)] for i in range(len(ds))]
        else:
            need = len(ds) - len(c1)
            assert need <= len(c2), (need, len(c2))
            cand = sorted(c1 + [c2[(i * len(c2)) // need] for i in range(need)])
        for g, x in zip(cand, ds):
            nd = sum(1 for y in pre[g] if y.startswith("ds_"))
            pre[g].insert(nd, x); cap[g] -= 1
        lastds = cand[-1]
    pre[2 * PL - 2].append("s_waitcnt lgkmcnt(0)")
    if PEEL:
        pre[2 * PL - 1].append("s_cmp_eq_u32 s%d, 31" % SCN)
        va[2 * PL - 1].append("s_cbranch_scc1 KA_LAST")
        last_mf = [mf[2 * PL + 16:3 * PL], mf[3 * PL + 16:4 * PL]]
    gb = max(gd - 12, 100)
    for j, x in enumerate(book): pre[gb + j].append(x)
    def put(g, x):
        while cap[g] <= 0: g += 1
        va[g].append(x); cap[g] -= 1
        return g
    ga = max(lastds, gb + len(book)) + 1
    put(ga, "v_add_u32 v%d, s%d, v%d" % (VKR, SRD_, VKL)); put(ga, "v_add_u32 v%d, s%d, v%d" % (VVR, SRD_, VVL))
    if soft:
        put(60, "v_add_u32 v%d, 1, v%d" % (VCNT, VCNT))
        pre[GPOST] += ["s_waitcnt vmcnt(16) lgkmcnt(0)", "ds_write_b32 v%d, v%d" % (VPW, VCNT)]
        pre[GRD] += ["ds_read_b128 %s, v%d" % (vr(FL), JUNK - 249 + 211)]
        pre[GCHK] += ["s_waitcnt lgkmcnt(0)"]
        va[GCHK] += ["v_min3_u32 v%d, v%d, v%d, v%d" % (FL, FL, FL + 1, FL + 2), "v_min_u32 v%d, v%d, v%d" % (FL, FL, FL + 3)]
        va[GCHK + 2] += ["v_cmp_lt_u32 vcc, v%d, v%d" % (FL, VCNT)]
        pre[NG - 2].append("s_cmp_lt_u32 s%d, s87" % SCN)
    else:
        pre[NG - 4].append("s_waitcnt vmcnt(16)")
        pre[NG - 2] += ["s_waitcnt lgkmcnt(0)", "s_cmp_lt_u32 s%d, s87" % SCN]
    def bscal(e):
        e("s_bfe_u32 s24, s2, 0x20001")
        e("s_and_b32 s25, s2, 1")
        e("s_lshl_b32 s25, s25, 3")
        e("s_bfe_u32 s26, s2, 0x30003")
        e("s_add_u32 s25, s25, s26")
        e("s_lshr_b32 s26, s2, 6")
        e("s_lshl_b32 s27, s25, 2")
        e("s_add_u32 s27, s27, s26")
        e("s_lshl_b32 s27, s27, 17")
        e("s_add_u32 s27, s27, s55")
        tab = 0
        for kp, o in enumerate(((1, 2, 3), (2, 0, 3), (0, 1, 3), (0, 1, 2))): tab |= (o[0] | o[1] << 2 | o[2] << 4) << (8 * kp)
        e("s_lshl_b32 s31, s24, 3")
        e("s_lshr_b32 s31, 0x%x, s31" % tab)
        e("s_lshl_b32 s32, s24, 11")
        e("s_add_u32 s32, s32, s27")
        for j in range(3):
            e("s_bfe_u32 s%d, s31, 0x%x" % (28 + j, (2 << 16) | (2 * j)))
            e("s_lshl_b32 s%d, s%d, 15" % (28 + j, 28 + j))
            e("s_add_u32 s%d, s%d, s32" % (28 + j, 28 + j))
    bscal(k.I)
    k.I("v_add_u32 v211, %d, v%d", PG_LDS, VL16)
    k.I("v_mov_b32 v%d, 0", VCNT)
    k.I("v_mov_b32 v%d, %d", 210, VT_LDS)
    k.I("ds_write_b32 v210, v%d", ZR)
    nst = 6 + 2 * extra_vm
    k.I("s_mov_b32 s87, %d", SIDE1)
    preloop(8 + nst, 16 + nst, first_ops, zero=True, late=late)
    stamp(k, 4, 250)
    k.I("s_barrier")
    k.l.append(".p2align 6")
    k.L("KA_LOOP")
    pre = [sorted(x, key=lambda y: 0 if y.startswith("s_") else 1) for x in pre]
    weave(k, mf, pre, va)
    if soft:
        k.I("s_cbranch_vccnz KA_SPIN")
        k.L("KA_SPINB")
    else: k.I("s_barrier")
    k.I("s_cbranch_scc1 KA_LOOP")
    if PEEL:
        k.I("s_branch KA_SIDE")
        k.L("KA_LAST")
        t1_ = [x for _, x in sorted(tail1)]; s2_ = [x for _, x in sorted(st2)]
        for x in t1_:
            k.I(x)
            if x.startswith("v_exp"): k.I("s_nop 0")
        for x in s2_[:3]: k.I(x) if x.startswith("v_exp") else (k.I("s_nop 0"), k.I(x))
        s2_ = s2_[3:]
        for x in last_mf[0][-2:] + last_mf[0][:-2]:
            k.I(x)
            c_ = 0
            while s2_ and c_ < 2:
                y = s2_[0]
                cost_ = 2 if y.startswith("v_exp") else 1
                if c_ + cost_ > 3 or (c_ and cost_ == 1 and k.l[-1].strip().startswith("v_exp")): break
                k.I(s2_.pop(0)); c_ += cost_
        for x in s2_:
            if not x.startswith("v_exp"): k.I("s_nop 0")
            k.I(x)
        k.I("s_nop 1")
        k.ext(last_mf[1][-2:] + last_mf[1][:-2])
    else:
        k.I("s_cmp_lt_u32 s%d, 32", SCN)
        k.I("s_cbranch_scc1 KA_SIDE")
    stamp(k, 5, 250)
    k.I("s_nop 7")
    k.I("v_mov_b32 v%d, 0x%x", VTHR, 0 if force_fallback else THR_END)
    k.I("s_mov_b64 s[84:85], 0")
    for q4 in range(4):
        k.I("v_cmp_nle_f32 vcc, v%d, v%d", LM + 4 * q4, VTHR)
        k.I("v_rcp_f32 v%d, v%d", LL + q4, LM + 4 * q4)
        k.I("s_or_b64 s[84:85], s[84:85], vcc")
    k.L("KA_FIN")
    RDY, REM, PND = 77, 78, 35
    def mk_rdy(src):
        k.I("v_cmp_eq_u32 vcc, s88, v%d", src)
        k.I("s_and_b32 s53, vcc_lo, vcc_hi")
        k.I("s_and_b32 s54, s53, 0x1fffffff")
        k.I("s_lshr_b32 s53, s53, s79")
        k.I("s_and_b32 s53, s53, s80")
        k.I("s_cmp_eq_u32 s54, 0x1fffffff")
        k.I("s_cselect_b32 s54, s80, 0")
        k.I("s_cmp_eq_u32 s24, 3")
        k.I("s_cselect_b32 s53, s54, s53")
    VDW, VDA, VO, RA, RB = 2, 4, 5, 6, 10
    bg, b1, b2, b3 = 16, 17, 18, 19
    k.I("buffer_load_dword v%d, v%d, s[%d:%d], s70 offen sc1", VSN, VPL, BP, BP + 3)
    k.I("s_cmp_lg_u64 s[84:85], 0")
    k.I("s_cselect_b32 s53, 1, 0")
    k.I("v_mov_b32 v%d, s53", RT)
    k.I("ds_or_b32 v210, v%d", RT)
    su = []
    e = lambda t, *a_: su.append(("d", t % a_ if a_ else t))
    e("s_and_b32 s33, s48, 1")
    e("s_lshr_b32 s34, s48, 1")
    e("v_lshrrev_b32 v%d, 4, v%d", bg, LANE)
    e("s_lshl_b32 s56, s26, 8")
    e("s_add_u32 s56, s56, s55")
    e("v_lshlrev_b32 v%d, 10, v%d", b1, bg)
    e("v_add_u32 v%d, s56, v%d", b1, b1)
    e("v_and_b32 v%d, 1, v%d", b2, LANE)
    e("v_lshl_add_u32 v%d, v%d, 4, v%d", b1, b2, b1)
    e("v_bfe_u32 v%d, v%d, 1, 3", b2, LANE)
    e("v_xor_b32 v%d, v%d, v%d", b2, b2, bg)
    e("v_lshl_add_u32 v%d, v%d, 5, v%d", VDW, b2, b1)
    e("v_xor_b32 v%d, 4, v%d", b2, b2)
    e("v_lshl_add_u32 v%d, v%d, 5, v%d", VDW + 1, b2, b1)
    e("v_add_u32 v%d, %d, v%d", VDW + 1, 4096 - 1024, VDW + 1)
    e("s_mul_i32 s57, s24, 44")
    e("s_min_u32 s57, s57, 128")
    e("s_lshl_b32 s56, s25, 1")
    e("s_add_u32 s56, s56, s34")
    e("s_mul_i32 s56, s56, %d", NKS)
    e("s_add_u32 s56, s56, s57")
    e("s_lshl_b32 s56, s56, 12")
    e("s_lshl_b32 s57, s33, 11")
    e("s_add_u32 s56, s56, s57")
    e("v_add_u32 v%d, s56, v%d", VDA, VL16)
    e("s_lshl_b32 s51, s48, 11")
    e("v_lshrrev_b32 v%d, 2, v%d", b1, LANE)
    e("v_lshlrev_b32 v%d, 8, v%d", b1, b1)
    e("v_and_b32 v%d, 3, v%d", b2, LANE)
    e("v_lshl_add_u32 v%d, v%d, 3, v%d", b1, b2, b1)
    e("v_bfe_u32 v%d, v%d, 2, 3", b2, LANE)
    e("s_lshl_b32 s62, s34, 2")
    e("v_xor_b32 v%d, s62, v%d", b2, b2)
    for nt in range(4):
        e("v_xor_b32 v%d, %d, v%d", b3, nt, b2)
        e("v_lshl_add_u32 v%d, v%d, 5, v%d", RA + nt, b3, b1)
    su1 = su; su = []
    e("s_lshl_b32 s63, s33, 2")
    for sl in range(4):
        e("s_add_u32 s62, s24, %d", sl)
        e("s_and_b32 s62, s62, 3")
        e("s_add_u32 s62, s62, s63")
        e("s_lshl_b32 s62, s62, 10")
        e("s_add_u32 s62, s62, 8192")
        e("v_add_u32 v%d, s62, v%d", RB + sl, VL16)
    e("s_lshl_b32 s62, s25, 7")
    e("s_lshl_b32 s63, s33, 6")
    e("s_add_u32 s62, s62, s63")
    e("s_lshl_b32 s63, s24, 4")
    e("s_add_u32 s62, s62, s63")
    e("s_lshl_b32 s62, s62, 10")
    e("s_lshl_b32 s63, s26, 8")
    e("s_add_u32 s62, s62, s63")
    e("s_lshl_b32 s63, s34, 7")
    e("s_add_u32 s62, s62, s63")
    e("v_and_b32 v%d, 15, v%d", b1, LANE)
    e("v_lshlrev_b32 v%d, 10, v%d", b1, b1)
    e("v_lshl_add_u32 v%d, v%d, 3, v%d", b1, bg, b1)
    e("v_add_u32 v%d, s62, v%d", VO, b1)
    k.I("s_lshl_b32 s52, s49, 14")
    k.I("s_add_u32 s52, s52, s65")
    def ostores(us, side):
        m = Mix(k, side, 3)
        n = 0
        for u in us:
            for q4 in range(4):
                B = 32 + 16 * (n % 4); n += 1
                acc = 32 * q4 + 8 * u
                for i in range(8): m.I("v_accvgpr_read_b32 v%d, a%d", B + i, acc + i)
                sel = "op_sel:[0,0] op_sel_hi:[1,0]" if q4 % 2 == 0 else "op_sel:[0,1] op_sel_hi:[1,1]"
                for i in range(4): m.I("v_pk_mul_f32 %s, %s, %s %s", vr(B + 2 * i, 2), vr(B + 2 * i, 2), vr(LL + (q4 & 2), 2), sel)
                for i in range(4): m.I("v_cvt_pk_bf16_f32 v%d, v%d, v%d", B + 8 + i, B + 2 * i, B + 2 * i + 1)
                m.I("buffer_store_dwordx4 %s, v%d, s[%d:%d], s52 offen offset:%d sc1", vr(B + 8), VSL if q4 < 2 else VSH, SACT, SACT + 3, 1024 * (q4 % 2))
            k.I("s_add_u32 s52, s52, 4096")
        m.flush()
    ostores(range(NS1), su1)
    k.I("s_waitcnt vmcnt(%d)", 4 * NS1)
    k.I("v_cmp_eq_u32 vcc, s88, v%d", VPA)
    k.I("s_and_b32 s71, vcc_lo, s69")
    mk_rdy(VSN)
    k.I("s_cmp_lg_u32 s48, 0")
    k.I("s_cbranch_scc1 KF_NW0")
    k.I("v_mov_b32 v%d, s53", RT + 1)
    k.I("ds_write_b32 v210, v%d offset:4", RT + 1)
    k.L("KF_NW0")
    k.I("s_waitcnt lgkmcnt(0)")
    k.I("s_barrier")
    k.I("ds_read_b64 %s, v210", vr(RT, 2))
    k.I("s_waitcnt lgkmcnt(0)")
    k.I("v_readfirstlane_b32 s53, v%d", RT)
    k.I("v_readfirstlane_b32 s%d, v%d", RDY, RT + 1)
    k.I("s_cmp_eq_u32 s53, 1")
    k.I("s_cbranch_scc1 KA_FALL")
    stamp(k, 6, 250)
    RN = 5
    A0 = 32; B0 = 64; AC = 96; RR = 160; VX = 192; W = 200
    SW, SA, SM, SD, SC = 56, 57, 58, 59, 60
    def pick(): return ["s_ff1_i32_b32 s%d, s%d" % (SW, RDY), "s_bitset0_b32 s%d, s%d" % (RDY, SW), "s_lshl_b32 s%d, s%d, 17" % (SW, SW)]
    def init_dma():
        k.I("s_andn2_b32 s%d, s80, s%d", REM, RDY)
        for s_ in range(6):
            if s_ % 4 == 0: k.ext(pick())
            b_ = (s_ // 2) * 32768 + (s_ % 2) * 16384
            k.I("s_add_u32 m0, s51, %d", b_)
            k.I("s_lshr_b32 s%d, s%d, 3", SA, SW)
            for j in range(2): k.I("buffer_load_dwordx4 v%d, s[%d:%d], s%d offen offset:%d lds", VDW + j, BW, BW + 3, SW, 1024 * j)
            k.I("s_add_u32 m0, s51, %d", b_ + 8192)
            k.I("s_add_u32 s%d, s%d, 32768", SW, SW)
            for j in range(2): k.I("buffer_load_dwordx4 v%d, s[%d:%d], s%d offen offset:%d lds", VDA, SACT, SACT + 3, SA, 1024 * j)
    k.I("s_bcnt1_i32_b32 s53, s%d", RDY)
    k.I("s_mov_b32 s%d, 99", PND)
    k.I("s_cmp_lt_u32 s53, %d", T0RDY)
    k.I("s_cbranch_scc1 KF_ST")
    k.I("s_mov_b32 s%d, 0", PND)
    init_dma()
    k.L("KF_ST")
    ostores(range(NS1, 4), su)
    stamp(k, 10, 250)
    k.I("s_cmp_eq_u32 s%d, 0", PND)
    k.I("s_cbranch_scc0 KF_SLOW")
    k.I("s_waitcnt vmcnt(%d)", 4 * (4 - NS1) + 16 + extra_vm)
    if NS1 == 4:
        k.I("s_mov_b64 exec, 1")
        k.I("buffer_store_dword v%d, v%d, s[%d:%d], s81 offen sc1", VTK, ZR, BP, BP + 3)
        k.I("s_mov_b64 exec, -1")
        k.I("s_mov_b32 s%d, 99", PND)
    k.L("KF_MAIN")
    stamp(k, 14, 250)
    def reads(st):
        A = lambda nt, e_: "ds_read_b64_tr_b16 %s, v%d offset:%d" % (vr(A0 + 16 * st + 4 * nt + 2 * e_, 2), RA + nt, st * 16384 + e_ * 4096)
        Bf = lambda sl: "ds_read_b128 %s, v%d offset:%d" % (vr(B0 + 16 * st + 4 * sl), RB + sl, st * 16384)
        return [A(0, 0), A(0, 1), Bf(0), A(1, 0), A(1, 1), A(2, 0), A(2, 1), A(3, 0), A(3, 1), Bf(1), Bf(2), Bf(3)]
    def mfmas(st, pre, va, first=False):
        i = 0
        for sl in range(4):
            for nt in range(4):
                d = AC + 16 * sl + 4 * nt
                k.I("%s %s, %s, %s, %s", MF, vr(d), vr(A0 + 16 * st + 4 * nt), vr(B0 + 16 * st + 4 * sl), "0" if first else vr(d))
                k.ext(pre[i]); k.ext(va[i]); i += 1
    RG = [0, 1, 2, 4, 5, 6, 8, 9, 10, 12, 13, 14]
    def sched(st_read, h):
        pre = [[] for _ in range(16)]; va = [[] for _ in range(16)]
        for g, x in zip(RG, reads(st_read)): pre[g].append(x)
        pre[3].insert(0, "s_waitcnt lgkmcnt(3)")
        if h is not None:
            pre[2].insert(0, "s_add_u32 m0, s%d, %d" % (SM, h * 16384))
            pre[3].append("buffer_load_dwordx4 v%d, s[%d:%d], s%d offen lds" % (VDW, BW, BW + 3, SW))
            pre[7].append("buffer_load_dwordx4 v%d, s[%d:%d], s%d offen offset:1024 lds" % (VDW + 1, BW, BW + 3, SW))
            pre[10].insert(0, "s_add_u32 m0, s%d, %d" % (SM, h * 16384 + 8192))
            pre[8].insert(0, "s_add_u32 s%d, s%d, 32768" % (SW, SW))
            pre[11].append("buffer_load_dwordx4 v%d, s[%d:%d], s%d offen lds" % (VDA, SACT, SACT + 3, SA))
            pre[15].append("buffer_load_dwordx4 v%d, s[%d:%d], s%d offen offset:1024 lds" % (VDA, SACT, SACT + 3, SA))
            pre[4].insert(0, "s_lshr_b32 s%d, s%d, 3" % (SA, SW))
            pre[5].insert(0, "s_cmp_ge_u32 s%d, s%d" % (SW, BW + 2))
            pre[6].insert(0, "s_cselect_b32 s%d, 0x7f000000, s%d" % (SA, SA))
        return pre, va
    def addr_updates(va, src):
        for rg, g in ((RA, 1), (RB, 2), (RA + 1, 5), (RA + 2, 8), (RA + 3, 10), (RB + 1, 12), (RB + 2, 13), (RB + 3, 14)):
            va[g].append("v_add_u32 v%d, %s, v%d" % (rg, src, rg))
    k.I("s_add_u32 s%d, s51, %d", SM, 3 * 32768)
    k.I("s_mov_b32 s%d, 0", SC)
    k.I("s_mov_b32 s62, 0x%x", (-(RN - 1) * 32768) & 0xffffffff)
    k.I("s_mov_b32 s63, 32768")
    k.I("s_barrier")
    k.ext(reads(0))
    k.I("s_waitcnt lgkmcnt(3)")
    pre, va = sched(1, None); addr_updates(va, "32768")
    mfmas(0, pre, va, first=True)
    k.l.append(".p2align 6")
    k.L("KB_LOOP")
    for body in range(2):
        if body == 1:
            k.I("s_cbranch_scc1 KB_REFILL")
            k.L("KB_PICK")
            k.ext(pick())
            k.L("KB_PICKED")
        k.I("s_waitcnt vmcnt(%d) lgkmcnt(3)", 9 if body == 0 else 8)
        k.I("s_barrier")
        pre, va = sched(0, 0)
        if body == 1:
            pre[1].append("buffer_load_dword v%d, v%d, s[%d:%d], s66 offen sc1" % (VSN, VPL, BP, BP + 3))
        pre[12].insert(0, "s_cmp_eq_u32 s63, %d" % ((RN - 1) * 32768))
        pre[13].insert(0, "s_cselect_b32 s%d, s62, 32768" % SD)
        pre[14].insert(0, "s_add_u32 s63, s63, s%d" % SD)
        pre[15].insert(0, "s_waitcnt lgkmcnt(3)")
        mfmas(1, pre, va)
        if body == 1:
            k.I("s_cmp_eq_u32 s%d, 10", SC)
            k.I("s_cbranch_scc1 KB_DONE")
        pre, va = sched(1, 1); addr_updates(va, "s%d" % SD)
        if body == 1: pre[0].insert(0, "s_add_u32 s%d, s%d, 1" % (SC, SC))
        pre[11].insert(0, "s_add_u32 s%d, s%d, 32768" % (SM, SM))
        pre[12].insert(0, "s_cmp_ge_u32 s%d, %d" % (SM, RN * 32768))
        pre[13].insert(0, "s_cselect_b32 s%d, s51, s%d" % (SM, SM))
        if body == 0:
            pre[0].insert(0, "s_cmp_eq_u32 s%d, 0" % REM)
            pre[1].insert(0, "s_cselect_b32 s66, 0x7f000000, s70")
            pre[14].insert(0, "s_cmp_eq_u32 s%d, 0" % RDY)
        mfmas(0, pre, va)
    k.I("s_branch KB_LOOP")
    k.L("KB_DONE")
    for nt in range(4): k.I("buffer_load_dwordx2 %s, v%d, s[%d:%d], 0 offen offset:%d", vr(VX + 2 * nt, 2), VO, SX, SX + 3, 32 * nt)
    stamp(k, 11, 250)
    k.I("s_cmp_lg_u32 s71, s69")
    k.I("s_cbranch_scc1 KF_PART")
    k.L("KF_PARTB")
    k.I("s_lshl_b32 s56, s24, 15")
    k.I("s_add_u32 s56, s56, s27")
    k.I("s_mov_b32 s58, 0xfffffffe")
    k.I("s_waitcnt lgkmcnt(0)")
    k.I("s_nop 2")
    for sl in range(1, 4):
        for i in range(8): k.I("v_cvt_pk_bf16_f32 v%d, v%d, v%d", RR + 8 * sl + i, AC + 16 * sl + 2 * i, AC + 16 * sl + 2 * i + 1)
        for i in range(8): k.I("v_min_u32 v%d, s58, v%d", RR + 8 * sl + i, RR + 8 * sl + i)
        k.I("s_add_u32 s57, s24, %d", sl)
        k.I("s_and_b32 s57, s57, 3")
        k.I("s_lshl_b32 s57, s57, 11")
        k.I("s_add_u32 s57, s57, s56")
        for j in range(2): k.I("buffer_store_dwordx4 %s, v%d, s[%d:%d], s57 offen offset:%d sc1", vr(RR + 8 * sl + 4 * j), VL16, BP, BP + 3, 1024 * j)
    IN = 32
    k.I("s_mov_b32 s89, 0")
    for j in range(3): k.I("s_mov_b64 s[%d:%d], -1", 56 + 2 * j, 57 + 2 * j)
    k.L("KX_POLL")
    for j in range(3):
        k.I("s_cmp_eq_u64 s[%d:%d], 0", 56 + 2 * j, 57 + 2 * j)
        k.I("s_cbranch_scc1 KX_S%d", j)
        for hh in range(2): k.I("buffer_load_dwordx4 %s, v%d, s[%d:%d], s%d offen offset:%d sc1", vr(IN + 8 * j + 4 * hh), VL16, BP, BP + 3, 28 + j, 1024 * hh)
        k.L("KX_S%d" % j)
    k.I("s_add_u32 s89, s89, 1")
    k.I("s_waitcnt vmcnt(0)")
    for j in range(3): k.I("v_max3_u32 v%d, v%d, v%d, v%d", W + j, IN + 8 * j, IN + 8 * j + 1, IN + 8 * j + 2)
    for j in range(3): k.I("v_max3_u32 v%d, v%d, v%d, v%d", W + j, W + j, IN + 8 * j + 3, IN + 8 * j + 4)
    for j in range(3): k.I("v_max3_u32 v%d, v%d, v%d, v%d", W + j, W + j, IN + 8 * j + 5, IN + 8 * j + 6)
    for j in range(3): k.I("v_max_u32 v%d, v%d, v%d", W + j, W + j, IN + 8 * j + 7)
    for j in range(3): k.I("v_cmp_eq_u32 s[%d:%d], -1, v%d", 56 + 2 * j, 57 + 2 * j, W + j)
    k.I("s_cmp_ge_u32 s89, 0x40000")
    k.I("s_cbranch_scc1 KX_GO")
    k.I("s_or_b64 s[62:63], s[56:57], s[58:59]")
    k.I("s_or_b64 s[62:63], s[62:63], s[60:61]")
    k.I("s_cbranch_scc0 KX_GO")
    k.I("s_sleep %d", XSLEEP)
    k.I("s_branch KX_POLL")
    k.L("KX_GO")
    stamp(k, 12, 250)
    k.I("s_mov_b32 s56, 0xbfb8aa3b")
    S = AC; F = AC + 16; Y = AC + 32; Z = AC + 48
    for i in range(8):
        k.I("v_lshlrev_b32 v%d, 16, v%d", F + 2 * i, IN + 16 + i)
        k.I("v_and_b32 v%d, v%d, v%d", F + 2 * i + 1, MASK, IN + 16 + i)
    k.I("s_cmp_lg_u32 s24, 3")
    k.I("s_cbranch_scc1 KB_NOSWAP")
    for i in range(16): k.I("v_swap_b32 v%d, v%d", S + i, F + i)
    for i in range(8): k.I("v_cvt_pk_bf16_f32 v%d, v%d, v%d", Y + i, F + 2 * i, F + 2 * i + 1)
    for i in range(8):
        k.I("v_lshlrev_b32 v%d, 16, v%d", F + 2 * i, Y + i)
        k.I("v_and_b32 v%d, v%d, v%d", F + 2 * i + 1, MASK, Y + i)
    k.L("KB_NOSWAP")
    for i in range(16): k.I("v_mul_f32 v%d, s56, v%d", Y + i, F + i)
    for i in range(16): k.I("v_exp_f32 v%d, v%d", Y + i, Y + i)
    for j in range(2):
        for i in range(8):
            k.I("v_lshlrev_b32 v%d, 16, v%d", Z + 2 * i, IN + 8 * j + i)
            k.I("v_and_b32 v%d, v%d, v%d", Z + 2 * i + 1, MASK, IN + 8 * j + i)
        for i in range(8): k.I("v_pk_add_f32 %s, %s, %s", vr(S + 2 * i, 2), vr(S + 2 * i, 2), vr(Z + 2 * i, 2))
    for i in range(16): k.I("v_add_f32 v%d, 1.0, v%d", Y + i, Y + i)
    for i in range(16): k.I("v_rcp_f32 v%d, v%d", Y + i, Y + i)
    for i in range(8):
        k.I("v_lshlrev_b32 v%d, 16, v%d", Z + 2 * i, VX + i)
        k.I("v_and_b32 v%d, v%d, v%d", Z + 2 * i + 1, MASK, VX + i)
    for i in range(8): k.I("v_pk_mul_f32 %s, %s, %s", vr(F + 2 * i, 2), vr(F + 2 * i, 2), vr(Y + 2 * i, 2))
    for i in range(8): k.I("v_pk_fma_f32 %s, %s, %s, %s", vr(Z + 2 * i, 2), vr(S + 2 * i, 2), vr(F + 2 * i, 2), vr(Z + 2 * i, 2))
    for i in range(8): k.I("v_cvt_pk_bf16_f32 v%d, v%d, v%d", Y + i, Z + 2 * i, Z + 2 * i + 1)
    for nt in range(4):
        k.I("buffer_store_dwordx2 %s, v%d, s[%d:%d], 0 offen offset:%d", vr(Y + 2 * nt, 2), VO, BO, BO + 3, 32 * nt)
    if gen.STAMPS:
        k.I("s_waitcnt vmcnt(0)")
        stamp(k, 13, 250)
        k.I("v_mov_b32 v250, s98")
        k.I("buffer_store_dword v250, v251, s[92:95], 0 offen")
    if gen.ENC:
        k.I("s_waitcnt vmcnt(0)")
        stamp(k, 13, 250)
        k.I("s_cmp_lg_u32 s2, 100")
        k.I("s_cbranch_scc1 KA_END")
        k.I("s_sub_u32 s100, s101, s100")
        k.I("s_lshl_b32 s100, s100, 2")
        k.I("s_min_u32 s100, s100, 100000")
        k.I("s_memrealtime s[98:99]")
        k.I("s_waitcnt lgkmcnt(0)")
        k.L("KA_ENCL")
        k.I("s_memrealtime s[96:97]")
        k.I("s_waitcnt lgkmcnt(0)")
        k.I("s_sub_u32 s96, s96, s98")
        k.I("s_cmp_lt_u32 s96, s100")
        k.I("s_cbranch_scc1 KA_ENCL")
    k.L("KA_END")
    k.I("s_endpgm")
    k.L("KA_GSIDE")
    k.I("s_cmp_eq_u32 s87, 3")
    k.I("s_cbranch_scc1 KA_GS2")
    k.I("s_cmp_eq_u32 s87, 6")
    k.I("s_cbranch_scc1 KA_GS3")
    k.I("s_cmp_eq_u32 s87, 7")
    k.I("s_cbranch_scc1 KA_GS4")
    k.I("buffer_load_dword v%d, v%d, s[%d:%d], 0 offen sc1", GR + 1, ZR, BD, BD + 3)
    k.I("s_mov_b32 s87, 3")
    k.I("s_branch KA_GEMM")
    k.L("KA_GS2")
    k.I("v_readfirstlane_b32 s88, v%d", GR + 1)
    k.I("s_cmp_lg_u32 s88, 0")
    k.I("s_cbranch_scc0 KA_TKSP")
    k.L("KA_TKOK")
    k.I("s_lshl_b32 s53, s84, 3")
    k.I("s_add_u32 s53, s53, 0x%x", PF_REL + 8192)
    k.I("s_mov_b32 exec_lo, 1")
    k.I("s_mov_b32 exec_hi, 1")
    k.I("buffer_store_dwordx2 %s, v%d, s[%d:%d], s53 offen sc1", vr(GR, 2), GR + 2, BP, BP + 3)
    k.I("s_mov_b64 exec, -1")
    k.I("s_mov_b32 s87, 6")
    k.I("s_branch KA_GEMM")
    k.L("KA_GS3")
    k.I("s_mov_b32 s87, 7")
    k.I("s_cmp_ge_u32 s48, 2")
    k.I("s_cbranch_scc1 KA_GEMM")
    k.I("s_lshl_b32 s53, s50, 13")
    k.I("s_cmp_eq_u32 s48, 1")
    k.I("s_cbranch_scc1 KA_TV")
    k.I("buffer_load_dword v%d, v%d, s[%d:%d], s53 offen", JUNK, T0 + 7, SK, SK + 3)
    k.I("s_branch KA_GEMM")
    k.L("KA_TV")
    k.I("s_add_u32 s53, s53, 8192")
    k.I("buffer_load_dword v%d, v%d, s[%d:%d], s53 offen", JUNK, T0 + 7, SV, SV + 3)
    k.I("s_branch KA_GEMM")
    k.L("KA_GS4")
    k.I("s_lshl_b32 s85, s50, 2")
    k.I("s_add_u32 s85, s85, s48")
    k.I("s_lshl_b32 s85, s85, 9")
    k.I("s_add_u32 s85, s85, 0x%x", PF_REL + 8192)
    stload()
    k.I("s_mov_b32 s87, 99")
    k.I("s_branch KA_GEMM")
    k.L("KA_STW")
    k.I("s_add_u32 s89, s89, 1")
    k.I("s_cmp_ge_u32 s89, 0x100000")
    k.I("s_cbranch_scc1 KA_STOK")
    k.I("s_sleep 2")
    stload()
    k.I("s_waitcnt vmcnt(0)")
    k.I("s_branch KA_STC")
    k.L("KA_SIDE")
    k.I("s_cmp_eq_u32 s87, %d", SIDE2)
    k.I("s_cbranch_scc1 KA_SIDE2")
    k.I("s_cmp_eq_u32 s87, %d", SIDE3)
    k.I("s_cbranch_scc1 KA_SIDE3")
    k.I("s_cmp_gt_u32 s87, %d", SIDE2)
    k.I("s_cbranch_scc1 KA_SIDET")
    for i in range(4): k.I("v_mov_b32 v%d, -1", RT + 4 + i)
    for j in range(3):
        for hh in range(2): k.I("buffer_store_dwordx4 %s, v%d, s[%d:%d], s%d offen offset:%d sc1", vr(RT + 4), VL16, BP, BP + 3, 28 + j, 1024 * hh)
    k.I("s_mov_b32 s87, %d", SIDE2)
    k.I("s_branch KA_LOOP")
    k.L("KA_SIDE2")
    k.I("s_lshl_b32 s67, s50, 2")
    k.I("s_add_u32 s67, s67, s48")
    k.I("s_lshl_b32 s67, s67, 7")
    k.I("s_lshl_b32 s81, s49, 2")
    k.I("s_add_u32 s81, s81, s67")
    k.I("s_add_u32 s81, s81, 0x%x", PF_REL)
    k.I("s_add_u32 s67, s67, 0x%x", PF_REL)
    k.I("v_mov_b32 v%d, s88", VTK)
    k.I("s_mov_b64 exec, 1")
    k.I("buffer_store_dword v%d, v%d, s[%d:%d], s81 offen sc1", VTK, ZR, BP, BP + 3)
    k.I("s_mov_b64 exec, -1")
    k.I("s_add_u32 s81, s81, 4096")
    k.I("s_lshl_b32 s70, s25, 8")
    k.I("s_add_u32 s70, s70, 0x%x", PF_REL)
    k.I("s_cmp_eq_u32 s24, 3")
    k.I("s_cselect_b32 s53, 0, 4096")
    k.I("s_add_u32 s70, s70, s53")
    k.I("v_lshlrev_b32 v%d, 2, v%d", VPL, LANE)
    k.I("s_mul_i32 s79, s24, 11")
    k.I("s_movk_i32 s80, 0x7ff")
    k.I("s_cmp_eq_u32 s24, 2")
    k.I("s_cselect_b32 s80, 0x3ff, s80")
    k.I("s_and_b32 s69, s49, 7")
    k.I("s_lshl_b32 s69, 0x01010101, s69")
    if STAG:
        k.I("s_lshr_b32 s53, s2, 3")
        k.I("s_mul_i32 s53, s53, %d", SIDE3 - SIDE2 - 1)
        k.I("s_lshr_b32 s53, s53, 5")
        k.I("s_add_u32 s87, s53, %d", SIDE2 + 1)
    else: k.I("s_mov_b32 s87, %d", SIDE3)
    k.I("s_branch KA_LOOP")
    def wtouch():
        k.I("s_and_b32 s53, s25, 7")
        k.I("s_lshl_b32 s53, s53, 2")
        k.I("s_add_u32 s53, s53, s48")
        k.I("s_lshl_b32 s53, s53, 15")
        k.I("s_lshl_b32 s54, s26, 8")
        k.I("s_add_u32 s53, s53, s54")
        k.I("v_lshrrev_b32 v%d, 1, v%d", RT + 1, LANE)
        k.I("v_lshlrev_b32 v%d, 10, v%d", RT + 1, RT + 1)
        k.I("v_and_b32 v%d, 1, v%d", RT + 2, LANE)
        k.I("v_lshl_add_u32 v%d, v%d, 7, v%d", RT + 1, RT + 2, RT + 1)
        k.I("buffer_load_dword v%d, v%d, s[%d:%d], s53 offen", JUNK, RT + 1, BW, BW + 3)
        k.I("s_add_u32 s53, s53, %d", 32 * 32768)
        k.I("buffer_load_dword v%d, v%d, s[%d:%d], s53 offen", JUNK, RT + 1, BW, BW + 3)
    k.L("KA_SIDE3")
    if STAG != 1: wtouch()
    k.I("buffer_load_dword v%d, v%d, s[%d:%d], s67 offen sc1", VPA, VPL, BP, BP + 3)
    k.I("s_mov_b32 s87, 32")
    k.I("s_branch KA_LOOP")
    k.L("KA_SIDET")
    wtouch()
    k.I("s_mov_b32 s87, %d", SIDE3)
    k.I("s_branch KA_LOOP")
    k.L("KA_TKSP")
    k.I("s_mov_b32 s85, 0")
    k.L("KA_TKS2")
    k.I("buffer_load_dword v%d, v%d, s[%d:%d], 0 offen sc1", GR + 1, ZR, BD, BD + 3)
    k.I("s_add_u32 s85, s85, 1")
    k.I("s_waitcnt vmcnt(0)")
    k.I("v_readfirstlane_b32 s88, v%d", GR + 1)
    k.I("s_cmp_ge_u32 s85, 0x100000")
    k.I("s_cbranch_scc1 KA_TKOK")
    k.I("s_cmp_eq_u32 s88, 0")
    k.I("s_cbranch_scc1 KA_TKS2")
    k.I("s_branch KA_TKOK")
    k.L("KF_PART")
    k.I("s_mov_b32 s89, 0")
    k.L("KF_PART2")
    k.I("buffer_load_dword v%d, v%d, s[%d:%d], s67 offen sc1", VPA, VPL, BP, BP + 3)
    k.I("s_add_u32 s89, s89, 1")
    k.I("s_waitcnt vmcnt(0)")
    k.I("v_cmp_eq_u32 vcc, s88, v%d", VPA)
    k.I("s_cmp_ge_u32 s89, 0x100000")
    k.I("s_cbranch_scc1 KF_PARTB")
    k.I("s_and_b32 s71, vcc_lo, s69")
    k.I("s_cmp_eq_u32 s71, s69")
    k.I("s_cbranch_scc1 KF_PARTB")
    k.I("s_sleep %d", SLEEP)
    k.I("s_branch KF_PART2")
    k.L("KB_REFILL")
    k.I("s_mov_b32 s%d, 0x7f000000", SW)
    k.I("s_cmp_eq_u32 s%d, 0", REM)
    k.I("s_cbranch_scc1 KB_PICKED")
    k.I("s_mov_b32 s89, 0")
    k.I("s_waitcnt vmcnt(16)")
    k.I("s_branch KB_REF4")
    k.L("KB_REF2")
    k.I("buffer_load_dword v%d, v%d, s[%d:%d], s70 offen sc1", VSN, VPL, BP, BP + 3)
    k.I("s_add_u32 s89, s89, 1")
    k.I("s_waitcnt vmcnt(0)")
    k.L("KB_REF4")
    mk_rdy(VSN)
    k.I("s_cmp_ge_u32 s89, 0x100000")
    k.I("s_cbranch_scc1 KB_REF3")
    k.I("s_cmp_eq_u32 s53, s80")
    k.I("s_cbranch_scc1 KB_REF3")
    k.I("s_sleep %d", SLEEP)
    k.I("s_branch KB_REF2")
    k.L("KB_REF3")
    k.I("s_mov_b32 s%d, s%d", RDY, REM)
    k.I("s_mov_b32 s%d, 0", REM)
    k.I("s_branch KB_PICK")
    k.L("KF_SLOW")
    k.I("buffer_load_dword v%d, v%d, s[%d:%d], s70 offen sc1", VSN, VPL, BP, BP + 3)
    k.I("s_waitcnt vmcnt(1)")
    k.I("s_mov_b64 exec, 1")
    k.I("buffer_store_dword v%d, v%d, s[%d:%d], s81 offen sc1", VTK, ZR, BP, BP + 3)
    k.I("s_mov_b64 exec, -1")
    k.I("s_cmp_lg_u32 s48, 0")
    k.I("s_cbranch_scc1 KF_SLW3")
    k.I("s_mov_b32 s89, 0")
    k.I("s_waitcnt vmcnt(1)")
    k.I("s_branch KF_SLW5")
    k.L("KF_SLW2")
    k.I("buffer_load_dword v%d, v%d, s[%d:%d], s70 offen sc1", VSN, VPL, BP, BP + 3)
    k.I("s_add_u32 s89, s89, 1")
    k.I("s_waitcnt vmcnt(0)")
    k.L("KF_SLW5")
    mk_rdy(VSN)
    k.I("s_cmp_ge_u32 s89, 0x100000")
    k.I("s_cselect_b32 s53, s80, s53")
    k.I("s_bcnt1_i32_b32 s54, s53")
    k.I("s_cmp_ge_u32 s54, %d", T0RDY)
    k.I("s_cbranch_scc1 KF_SLW4")
    k.I("s_sleep %d", SLEEP2)
    k.I("s_branch KF_SLW2")
    k.L("KF_SLW4")
    k.I("v_mov_b32 v%d, s53", RT + 1)
    k.I("ds_write_b32 v210, v%d offset:8", RT + 1)
    k.I("s_waitcnt lgkmcnt(0)")
    k.L("KF_SLW3")
    k.I("s_barrier")
    k.I("ds_read_b32 v%d, v210 offset:8", RT + 1)
    k.I("s_waitcnt lgkmcnt(0)")
    k.I("v_readfirstlane_b32 s%d, v%d", RDY, RT + 1)
    init_dma()
    k.I("buffer_load_dword v%d, v%d, s[%d:%d], s70 offen sc1", VSN, VPL, BP, BP + 3)
    k.I("s_waitcnt vmcnt(17)")
    k.I("s_branch KF_MAIN")
    if soft:
        k.L("KA_SPIN")
        k.I("s_mov_b32 s89, 0")
        k.L("KA_SPIN2")
        k.I("ds_read_b128 %s, v211", vr(FL))
        k.I("s_add_u32 s89, s89, 1")
        k.I("s_waitcnt lgkmcnt(0)")
        k.I("v_min3_u32 v%d, v%d, v%d, v%d", FL, FL, FL + 1, FL + 2)
        k.I("v_min_u32 v%d, v%d, v%d", FL, FL, FL + 3)
        k.I("v_cmp_lt_u32 vcc, v%d, v%d", FL, VCNT)
        k.I("s_cmp_lt_u32 s89, 0x100000")
        k.I("s_cbranch_scc0 KA_SPIN3")
        k.I("s_cbranch_vccnz KA_SPIN2")
        k.L("KA_SPIN3")
        k.I("s_cmp_lt_u32 s%d, s87", SCN)
        k.I("s_branch KA_SPINB")
    def sm_stream(buf, h):
        o = []; P = PP + 8 * h; S = Sreg(buf, h, 0, 0)
        for e in range(17):
            if e < 16: o.append((2 * e, "v_exp_f32 v%d, v%d" % (E(e), S + e)))
            kk = e - 1
            if kk >= 0:
                ts = TS + 2 * h + kk // 8
                if kk % 8 == 1: o.append((2 * e + 1, "v_add_f32 v%d, v%d, v%d" % (ts, E(kk - 1), E(kk))))
                elif kk % 8 > 1: o.append((2 * e + 1, "v_add_f32 v%d, v%d, v%d" % (ts, E(kk), ts)))
                if kk % 2 == 1: o.append((2 * e + 1, "v_cvt_pk_bf16_f32 v%d, v%d, v%d" % (P + kk // 2, E(kk - 1), E(kk))))
        o.append((35, "v_max_f32 v%d, v%d, v%d" % (VMX, TS + 2 * h, TS + 2 * h + 1)))
        o.append((39, "v_cmp_gt_f32 vcc, v%d, v%d" % (VMX, VTHR)))
        return o
    k.L("KA_FALL")
    k.I("s_waitcnt vmcnt(0) lgkmcnt(0)")
    k.I("s_barrier")
    k.I("v_mov_b32 v%d, 2", RT)
    k.I("ds_write_b32 v210, v%d", RT)
    emit_now(dmaKV(0, ("s61", 0), None, skip_odd=True) + dmaKV(1, ("s61", SLOT), None) + dmaKV(2, ("s61", 2 * SLOT), None) + dmaKV(3, ("s61", 3 * SLOT), None))
    for i in range(128): k.I("v_accvgpr_write_b32 a%d, 0", i)
    for i in range(4): k.I("v_mov_b32 v%d, 0", LL + i)
    k.I("v_mov_b32 v%d, 0x%x", VTHR, THR)
    NG = 128
    preloop(24, 16, [x for g, x in sm_stream(0, 0) if 96 + shift + g < NG])
    k.I("s_barrier")
    mf = [None] * NG; pre = [[] for _ in range(NG)]; va = [[] for _ in range(NG)]
    rare = []
    for p in range(2):
        for h in range(2):
            base = (2 * p + h) * 32
            mm = qk(p, 1 - p, h) + pv(p, h)
            for g in range(32): mf[base + g] = mm[g]
            o = 1 - h
            buf = p if h == 0 else 1 - p
            for g, x in sm_stream(buf, o): va[(base + shift + g) % NG].append(x)
            lab = "KA_R%d%d" % (p, h)
            pre[(base + 32 + 15) % NG] += ["s_cbranch_vccnz %s" % lab, lab + "B:"]
            rare.append((lab, o, buf))
            va[(base + 32 + 19) % NG].append("v_add_f32 v%d, v%d, v%d" % (LL + 2 * o, TS + 2 * o, LL + 2 * o))
            va[(base + 32 + 23) % NG].append("v_add_f32 v%d, v%d, v%d" % (LL + 2 * o + 1, TS + 2 * o + 1, LL + 2 * o + 1))
    for p in range(2):
        ds = kreads(1 - p, p) + vreads(1 - p, VOFF_ODD if p == 0 else VOFF_EVEN)
        for i, x in enumerate(ds): pre[p * 64 + 1 + 2 * i].insert(0, x)
        pre[p * 64 + 62].append("s_waitcnt lgkmcnt(0)")
    gd = 6; pend = []
    for t, x in dmaKV(0, ("s%d" % SMD, 0), "s%d" % SOF):
        if t == 's': pend.append(x)
        else:
            for j, sx in enumerate(pend): pre[gd - 2 * (len(pend) - j)].append(sx)
            pre[gd].append(x); pend = []
            gd += 14
    for j, x in enumerate(book): pre[108 + 2 * j].append(x)
    va[125].append("v_add_u32 v%d, s%d, v%d" % (VKR, SRD_, VKL))
    va[127].append("v_add_u32 v%d, s%d, v%d" % (VVR, SRD_, VVL))
    pre[124].append("s_waitcnt vmcnt(16)")
    pre[126].append("s_cmp_lt_u32 s%d, 32" % SCN)
    k.L("KA_LOOP2")
    weave(k, mf, pre, va)
    k.I("s_barrier")
    k.I("s_cbranch_scc1 KA_LOOP2")
    k.I("s_nop 7")
    for q4 in range(4):
        xreduce(k, "v_add_f32", LL + q4, RT)
        k.I("v_rcp_f32 v%d, v%d", LL + q4, LL + q4)
    k.I("s_mov_b64 s[84:85], 0")
    k.I("s_branch KA_FIN")
    for lab, o, buf in rare:
        k.L(lab)
        k.I("s_nop 15")
        for qt in range(2):
            q4 = 2 * o + qt
            S = Sreg(buf, o, qt, 0); SN = Sreg(1 - buf, o, qt, 0)
            k.I("v_max3_f32 v%d, v%d, v%d, v%d", RT, S, S + 1, S + 2)
            k.I("v_max3_f32 v%d, v%d, v%d, v%d", RT, RT, S + 3, S + 4)
            k.I("v_max3_f32 v%d, v%d, v%d, v%d", RT, RT, S + 5, S + 6)
            k.I("v_max3_f32 v%d, v%d, v%d, 0", RT, RT, S + 7)
            xreduce(k, "v_max_f32", RT, RT + 1)
            k.I("v_exp_f32 v%d, -v%d", RT + 1, RT)
            for i in range(4): k.I("v_sub_f32 v%d, v%d, v%d", NM + 4 * q4 + i, NM + 4 * q4 + i, RT)
            for i in range(8): k.I("v_sub_f32 v%d, v%d, v%d", S + i, S + i, RT)
            for i in range(8): k.I("v_sub_f32 v%d, v%d, v%d", SN + i, SN + i, RT)
            k.I("v_mul_f32 v%d, v%d, v%d", LL + q4, LL + q4, RT + 1)
            for i in range(0, 32, 4):
                for j in range(4): k.I("v_accvgpr_read_b32 v%d, a%d", RT + 2 + j, 32 * q4 + i + j)
                for j in range(4): k.I("v_mul_f32 v%d, v%d, v%d", RT + 2 + j, RT + 2 + j, RT + 1)
                for j in range(4): k.I("v_accvgpr_write_b32 a%d, v%d", 32 * q4 + i + j, RT + 2 + j)
            for i in range(8): k.I("v_exp_f32 v%d, v%d", RT + 2 + i, S + i)
            k.I("s_nop 0")
            k.I("v_add_f32 v%d, v%d, v%d", TS + q4, RT + 2, RT + 3)
            for i in range(2, 8): k.I("v_add_f32 v%d, v%d, v%d", TS + q4, TS + q4, RT + 2 + i)
            for i in range(4): k.I("v_cvt_pk_bf16_f32 v%d, v%d, v%d", PP + 4 * q4 + i, RT + 2 + 2 * i, RT + 3 + 2 * i)
        k.I("s_nop 3")
        k.I("s_branch %sB", lab)
    return k.text(), descriptor("ka_kernel", 512, 92, 256), 163840

if __name__ == "__main__":
    if "stamps" in sys.argv: gen.STAMPS = True
    if "dbgstamps" in sys.argv: gen.STAMPS = "dbg"
    for a in sys.argv:
        if a.startswith("touch="): TOUCH_AT = int(a[6:])
        if a.startswith("sleep="): SLEEP = int(a[6:])
        if a.startswith("enc="): gen.ENC = [int(x) for x in a[4:].split(",")]
        if a.startswith("xsleep="): XSLEEP = int(a[7:])
        if a.startswith("side3="): SIDE3 = int(a[6:])
        if a.startswith("t0="): T0RDY = int(a[3:])
        if a.startswith("stag="): STAG = int(a[5:])
        if a.startswith("sleep2="): SLEEP2 = int(a[7:])
        if a.startswith("side1="): SIDE1 = int(a[6:])
        if a.startswith("side2="): SIDE2 = int(a[6:])
        if a.startswith("ns1="): NS1 = int(a[4:])
    fused = "fused" in sys.argv
    if "nopeel" in sys.argv: PEEL = False
    if "norot" in sys.argv: ROT = False
    if "wbl2" in sys.argv: WBL2 = True
    ta, da, la = kernel_a(soft="hard" not in sys.argv, force_fallback="fb" in sys.argv, fused=fused)
    out = "full.s"
    for a in sys.argv:
        if a.startswith("out="): out = a[4:]
    if fused:
        assemble([("ka_kernel", ta + "TEXT_END:\n", da, la, 256)], out)
    else:
        tb, db, lb = kernel_b2()
        tb += "TEXT_END:\n"
        assemble([("ka_kernel", ta, da, la, 256), ("kb_kernel", tb, db, lb, 256)], out)
```
